```python
import torch

def _softmax(x, axis=-1):
    return torch.softmax(x, dim=axis)
def _gelu(x):
    return torch.nn.functional.gelu(x, approximate="tanh")
def _silu(x):
    return torch.nn.functional.silu(x)
def _sigmoid(x):
    return torch.sigmoid(x)
def _layernorm(x, axis=-1, eps=1e-5):
    m = x.mean(dim=axis, keepdim=True)
    v = x.var(dim=axis, keepdim=True, unbiased=False)
    return (x - m) / torch.sqrt(v + eps)
def _scatter_add(tgt, idx, src, axis=0):
    return tgt.clone().index_add_(axis, idx, src)
def _segment_sum(src, seg, n):
    out = torch.zeros((n,) + src.shape[1:], dtype=src.dtype)
    return out.index_add_(0, seg, src)
def _pad(x, pw):
    flat = tuple(v for pair in reversed(pw) for v in pair)
    return torch.nn.functional.pad(x, flat)

kernel_name = 'interleave_layers__sliding_local_dilated__dense_activation_relu__prompt'

def setup_inputs():

    _w = (lambda a: (lambda t: t.to(torch.bfloat16) if t.is_floating_point() else t)(torch.as_tensor(a)))
    def _A_setup():
        B, S, D = 1, 2048, 512
        return {
            "x": _w((lambda *s: torch.randn(*s, dtype=torch.bfloat16) * 0.05)(B, S, D)),
            "wqkv": _w((lambda *s: torch.randn(*s, dtype=torch.bfloat16) * 0.05)(D, 3 * D)),
            "wo": _w((lambda *s: torch.randn(*s, dtype=torch.bfloat16) * 0.05)(D, D)),
        }
    _A_in = _A_setup()

    def _B_setup():
        B, S, D, Dff = 1, 2048, 512, 1792
        return {
            "x": _w((lambda *s: torch.randn(*s, dtype=torch.bfloat16) * 0.05)(B, S, D)),
            "w1": _w((lambda *s: torch.randn(*s, dtype=torch.bfloat16) * 0.05)(D, Dff)),
            "w2": _w((lambda *s: torch.randn(*s, dtype=torch.bfloat16) * 0.05)(Dff, D)),
        }
    _B_in = _B_setup()

    return {
        "A_x": _A_in["x"],
        "A_wqkv": _A_in["wqkv"],
        "A_wo": _A_in["wo"],
        "B_x": _B_in["x"],
        "B_w1": _B_in["w1"],
        "B_w2": _B_in["w2"],
    }

def reference(A_x, A_wqkv, A_wo, B_x, B_w1, B_w2):
    def _A_ref(x, wqkv, wo):
        B, S, D = x.shape
        H = 32; Dh = D // H
        W, dil = 8, 2
        qkv = (lambda x, *d: x.permute(*d))((x @ wqkv).reshape(B, S, 3, H, Dh), 2, 0, 3, 1, 4)
        q, k, v = qkv[0], qkv[1], qkv[2]
        scale = Dh ** -0.5
        pos = torch.arange(S)
        off = torch.arange(W) * dil
        idx = pos[:, None] - off[None, :]
        mask = idx >= 0
        idx_c = torch.where(mask, idx, 0).reshape(-1)
        kg = k[:, :, idx_c, :].reshape(B, H, S, W, Dh)
        vg = v[:, :, idx_c, :].reshape(B, H, S, W, Dh)
        logits = torch.einsum("bhsd,bhswd->bhsw", q, kg) * scale
        logits = torch.where(mask[None, None, :, :], logits, -1e9)
        attn = _softmax(logits, axis=-1)
        o = torch.einsum("bhsw,bhswd->bhsd", attn, vg)
        return (lambda x, *d: x.permute(*d))(o, 0, 2, 1, 3).reshape(B, S, D) @ wo

    def _B_ref(x, w1, w2):
        h = torch.einsum("bsd,df->bsf", x, w1)
        zero = torch.zeros_like(h)
        h = torch.maximum(h, zero)
        return torch.einsum("bsf,fd->bsd", h, w2)

    x = A_x
    x = x + _A_ref(_layernorm(x, axis=-1), A_wqkv, A_wo)
    x = x + _B_ref(_layernorm(x, axis=-1), B_w1, B_w2)
    x = x + _A_ref(_layernorm(x, axis=-1), A_wqkv, A_wo)
    x = x + _B_ref(_layernorm(x, axis=-1), B_w1, B_w2)
    return x
```

```python
class Asm:
    def __init__(self):
        self.lines = []
        self._lab = 0
    def __call__(self, s=""):
        for l in s.split("\n"):
            self.lines.append(l)
    def label(self, name):
        self.lines.append(f"{name}:")
    def newlabel(self, base="L"):
        self._lab += 1
        return f"{base}_{self._lab}"
    def text(self):
        return "\n".join(self.lines) + "\n"

def header(launches):
    out = []
    if len(launches) == 1 and launches[0][0] is None:
        k, g, b, lds = launches[0]
        out.append(f"; @launch grid=({g[0]},{g[1]},{g[2]}) block=({b[0]},{b[1]},{b[2]}) lds={lds}")
    else:
        for k, g, b, lds in launches:
            out.append(f"; @launch kernel={k} grid=({g[0]},{g[1]},{g[2]}) block=({b[0]},{b[1]},{b[2]}) lds={lds}")
    out.append('.amdgcn_target "amdgcn-amd-amdhsa--gfx950"')
    out.append(".text")
    return "\n".join(out) + "\n"

def kernel_begin(name):
    return f".globl {name}\n.p2align 8\n.type {name},@function\n{name}:\n"

def kernel_desc(name, vgpr=256, sgpr=102, accum=256):
    return f""".amdhsa_kernel {name}
  .amdhsa_next_free_vgpr {vgpr}
  .amdhsa_next_free_sgpr {sgpr}
  .amdhsa_accum_offset {accum}
  .amdhsa_group_segment_fixed_size 0
  .amdhsa_kernarg_size 72
  .amdhsa_user_sgpr_count 2
  .amdhsa_user_sgpr_kernarg_segment_ptr 1
  .amdhsa_system_sgpr_workgroup_id_x 1
  .amdhsa_float_denorm_mode_32 3
  .amdhsa_float_denorm_mode_16_64 3
.end_amdhsa_kernel
"""
def rodata_begin():
    return '.section .rodata,"a"\n.p2align 6\n'
```

```python
import re, copy

def v(n, c=1): return f"v{n}" if c == 1 else f"v[{n}:{n+c-1}]"
def a_(n, c=1): return f"a{n}" if c == 1 else f"a[{n}:{n+c-1}]"
def s(n, c=1): return f"s{n}" if c == 1 else f"s[{n}:{n+c-1}]"

_REG = re.compile(r"^-?(?:abs\()?\|?([vas])(?:(\d+)|\[(\d+):(\d+)\])\)?\|?$")
def regs_of(op):
    op = op.strip()
    if op in ("vcc", "exec"): return [op]
    if op in ("vcc_lo", "vcc_hi"): return ["vcc"]
    if op in ("exec_lo", "exec_hi"): return ["exec"]
    if op == "m0": return ["m0"]
    if op == "scc": return ["scc"]
    m = _REG.match(op)
    if not m: return []
    k = m.group(1)
    if m.group(2) is not None: return [f"{k}{m.group(2)}"]
    return [f"{k}{i}" for i in range(int(m.group(3)), int(m.group(4)) + 1)]

TRANS = ("v_exp_f32", "v_log_f32", "v_rcp_f32", "v_rsq_f32", "v_sqrt_f32", "v_sin_f32", "v_cos_f32")

class Ins:
    __slots__ = ("text", "kind", "rd", "wr", "tag", "mn", "passes", "srcC", "wide", "dpp", "cmt")
    def __init__(self, text, tag=None):
        self.text = text; self.tag = tag
        t = text.split(";")[0].strip()
        parts = t.split(None, 1)
        mn = parts[0]; self.mn = mn
        rest = parts[1] if len(parts) > 1 else ""
        ops = []; cur = ""; depth = 0
        for ch in rest:
            if ch in "[(": depth += 1
            if ch in "])": depth -= 1
            if ch == "," and depth == 0: ops.append(cur.strip()); cur = ""
            else: cur += ch
        if cur.strip(): ops.append(cur.strip())
        mods = ""
        if ops:
            sp = ops[-1].split(None, 1)
            ops[-1] = sp[0]
            mods = sp[1] if len(sp) > 1 else ""
        R = [regs_of(o) for o in ops]
        rd = set(); wr = set(); self.passes = 0; self.srcC = None; self.wide = False
        self.dpp = ("row_" in mods or "quad_perm" in mods or "_dpp" in mn)
        flat = lambda L: [x for l in L for x in l]
        if mn.startswith("v_mfma"):
            self.kind = "mfma"; wr |= set(R[0]); rd |= set(flat(R[1:]))
            self.passes = 8 if "32x32" in mn else 4
            self.srcC = tuple(R[3])
        elif mn.startswith("v_permlane") and "swap" in mn:
            self.kind = "permlane"; wr |= set(R[0] + R[1]); rd |= set(R[0] + R[1])
        elif mn.startswith("v_readfirstlane") or mn.startswith("v_readlane"):
            self.kind = "readlane"; wr |= set(R[0]); rd |= set(flat(R[1:]))
        elif mn.startswith("v_writelane"):
            self.kind = "valu"; wr |= set(R[0]); rd |= set(flat(R))
        elif mn.startswith("v_cmp"):
            self.kind = "valu"; wr |= set(R[0]); rd |= set(flat(R[1:]))
        elif mn.startswith("v_"):
            self.kind = "trans" if mn.replace("_e32", "").replace("_e64", "") in TRANS else "valu"
            wr |= set(R[0]); rd |= set(flat(R[1:]))
            if mn.startswith(("v_fmac", "v_pk_fmac", "v_dot2c", "v_mac")) or self.dpp: rd |= set(R[0])
            if mn.startswith(("v_add_co", "v_sub_co", "v_addc_co", "v_subb_co")):
                wr |= set(R[1])
            if mn.startswith("v_swap"): wr |= set(R[1]); rd |= set(R[0])
        elif mn.startswith("buffer_load") or mn.startswith("global_load"):
            if re.search(r"\blds\b", mods):
                self.kind = "dma"; rd |= set(flat(R)); rd.add("m0")
            else:
                self.kind = "vmem_ld"; wr |= set(R[0]); rd |= set(flat(R[1:]))
        elif mn.startswith("buffer_store") or mn.startswith("global_store"):
            self.kind = "vmem_st"; rd |= set(flat(R)); self.wide = mn.endswith(("x3", "x4"))
            self.srcC = tuple(R[0]) if mn.startswith("buffer") else tuple(R[1])
        elif mn.startswith("ds_read") or mn.startswith("ds_bpermute") or mn.startswith("ds_swizzle"):
            self.kind = "ds_rd"; wr |= set(R[0]); rd |= set(flat(R[1:]))
        elif mn.startswith("ds_write") or mn.startswith("ds_add"):
            self.kind = "ds_wr"; rd |= set(flat(R))
        elif mn.startswith(("s_load", "s_memtime", "s_memrealtime", "s_buffer_load")):
            self.kind = "smem"; wr |= set(R[0]); rd |= set(flat(R[1:]))
        elif mn == "s_waitcnt": self.kind = "wait"
        elif mn == "s_nop": self.kind = "nop"
        elif mn == "s_barrier": self.kind = "barrier"
        elif mn.startswith(("s_cbranch", "s_branch")):
            self.kind = "branch"
            if "vcc" in mn: rd.add("vcc")
        elif mn in ("s_endpgm", "s_setprio", "s_sleep"): self.kind = "misc"
        elif mn.startswith("s_cmp") or mn.startswith("s_bitcmp"):
            self.kind = "salu"; rd |= set(flat(R)); wr.add("scc")
        elif mn.startswith("s_"):
            self.kind = "salu"; wr |= set(R[0]); rd |= set(flat(R[1:]))
            if "saveexec" in mn: wr.add("exec"); rd.add("exec")
        elif mn.endswith(":"): self.kind = "label"
        else: raise ValueError("unknown instruction: " + text)
        self.rd = rd; self.wr = wr

class Ctl:
    def __init__(self, kind, **kw): self.kind = kind; self.__dict__.update(kw)

class State:
    def __init__(self):
        self.clock = 0
        self.vm = []
        self.lg = []
        self.valu_wr = {}; self.trans_wr = {}; self.mfma_wr = {}; self.mfma_rdC = {}; self.wide_rd = {}
        self.m0_wr = -100
    def clone(self): return copy.deepcopy(self)

class Prog:
    def __init__(self):
        self.items = []; self._lab = 0
    def __call__(self, text, tag=None):
        for l in text.strip("\n").split("\n"):
            l = l.strip()
            if not l or l.startswith(";"): continue
            self.items.append(Ins(l, tag))
        return self
    def add(self, it):
        if isinstance(it, (list, tuple)):
            for x in it: self.add(x)
        elif isinstance(it, str): self(it)
        else: self.items.append(it)
    def newlabel(self, base="L"):
        self._lab += 1; return f"{base}_{self._lab}"
    def comment(self, c): self.items.append(Ctl("comment", text=c))
    def wait_vm(self, *tags): self.items.append(Ctl("wait_vm", tags=set(tags)))
    def wait_vm_all(self): self.items.append(Ctl("wait_vm_all"))
    def wait_lg_all(self): self.items.append(Ctl("wait_lg_all"))
    def wait_lg(self, *tags): self.items.append(Ctl("wait_lg", tags=set(tags)))
    def ifelse(self, branch_if_else, A, B):
        self.items.append(Ctl("ifelse", br=branch_if_else, A=A, B=B, l1=self.newlabel("ELSE"), l2=self.newlabel("ENDIF")))
    def raw(self, text, clears_vm=False, clears_lg=False):
        self.items.append(Ctl("raw", text=text, clears_vm=clears_vm, clears_lg=clears_lg))

def sub(parent):
    p = Prog(); p._lab = parent._lab + 1000; parent._lab += 2000; return p

MF_RAW = {2: 5, 4: 8, 8: 12, 16: 20}
MF_OVL = {2: 4, 4: 6, 8: 10, 16: 18}
MF_WARC = {2: 1, 4: 3, 8: 7, 16: 15}

class Finalizer:
    def __init__(self):
        self.out = []; self.stats = dict(nops=0, waits=0, n=0)
    def emit(self, st, text, n=1):
        self.out.append("    " + text); st.clock += n
    def need_wait(self, st, vmN, lgN):
        if vmN is None and lgN is None: return
        parts = []
        if vmN is not None:
            vmN = min(vmN, 62); parts.append(f"vmcnt({vmN})"); st.vm = st.vm[len(st.vm) - vmN:] if vmN > 0 else []
        if lgN is not None:
            lgN = min(lgN, 14); parts.append(f"lgkmcnt({lgN})"); st.lg = st.lg[len(st.lg) - lgN:] if lgN > 0 else []
        self.emit(st, "s_waitcnt " + " ".join(parts)); self.stats["waits"] += 1
    def run(self, prog, st):
        for it in prog.items:
            if isinstance(it, Ctl): self.ctl(it, st)
            else: self.ins(it, st)
        return st
    def ctl(self, c, st):
        k = c.kind
        if k == "comment": self.out.append("    ; " + c.text)
        elif k == "wait_vm":
            idx = [i for i, (t, _) in enumerate(st.vm) if t in c.tags]
            if idx: self.need_wait(st, len(st.vm) - 1 - idx[-1], None)
        elif k == "wait_vm_all":
            if st.vm: self.need_wait(st, 0, None)
        elif k == "wait_lg_all":
            if st.lg: self.need_wait(st, None, 0)
        elif k == "wait_lg":
            idx = [i for i, (kk, t, _) in enumerate(st.lg) if t in c.tags]
            if idx:
                n = len(st.lg) - 1 - idx[-1]
                if any(kk == "smem" for kk, _, _ in st.lg): n = 0
                self.need_wait(st, None, n)
        elif k == "raw":
            lines = [l.strip() for l in c.text.strip("\n").split("\n") if l.strip()]
            rd = set(); wr = set()
            for l in lines:
                if l.endswith(":") or l.startswith(";"): continue
                i = Ins(l); rd |= i.rd; wr |= i.wr
            fake = Ins("s_sleep 0"); fake.rd = rd; fake.wr = wr; fake.kind = "rawuse"
            self.memdeps(fake, st)
            need = 0
            for r in rd | wr:
                if r in st.mfma_wr: need = max(need, MF_RAW[st.mfma_wr[r][1]] - (st.clock - st.mfma_wr[r][0] - 1))
                if r in st.valu_wr: need = max(need, 5 - (st.clock - st.valu_wr[r] - 1))
                if r in st.wide_rd: need = max(need, 2 - (st.clock - st.wide_rd[r] - 1))
            self.pad(st, need)
            for l in lines:
                self.out.append(l if l.endswith(":") else "    " + l)
            st.clock += 1
            for r in wr:
                if r[0] in "vas" or r == "vcc": st.valu_wr[r] = st.clock - 1
            if "m0" in wr: st.m0_wr = st.clock - 1
            if c.clears_vm: st.vm = []
            if c.clears_lg: st.lg = []
        elif k == "ifelse":
            self.ins(Ins(f"{c.br} {c.l1}"), st)
            sa = self.run(c.A, st.clone())
            if c.B.items:
                self.out.append(f"    s_branch {c.l2}"); sa.clock += 1
            self.out.append(f"{c.l1}:")
            sb = self.run(c.B, st.clone())
            if c.B.items: self.out.append(f"{c.l2}:")
            ta = [t for t, _ in sa.vm]; tb = [t for t, _ in sb.vm]
            n = min(len(ta), len(tb))
            assert ta[len(ta)-n:] == tb[len(tb)-n:], f"ifelse vm mismatch {ta} {tb}"
            lng, sh = (sa.vm, sb.vm) if len(ta) >= len(tb) else (sb.vm, sa.vm)
            na = sa_new = getattr(sa, "_vm_issued", 0) ; nb = getattr(sb, "_vm_issued", 0)
            assert na == nb, f"ifelse: arms issue different vm op counts {na} {nb}"
            vm = [(t, set(d)) for t, d in lng]
            for i in range(1, n + 1): vm[-i][1].update(sh[-i][1])
            la = getattr(sa, "_lg_issued", 0); lb = getattr(sb, "_lg_issued", 0)
            if la != lb:
                assert not sa.lg and not sb.lg or True
                lg = [("smem", None, set().union(*[d for _, _, d in sa.lg + sb.lg]))] if (sa.lg or sb.lg) else []
            else:
                lngl, shl = (sa.lg, sb.lg) if len(sa.lg) >= len(sb.lg) else (sb.lg, sa.lg)
                lg = [(k2, t, set(d)) for k2, t, d in lngl]
                for i in range(1, len(shl) + 1): lg[-i][2].update(shl[-i][2])
            new = st; clk = max(sa.clock, sb.clock); new.clock = clk
            new.vm = vm; new.lg = lg
            new._vm_issued = na; new._lg_issued = max(la, lb)
            def mg(da, db, key=lambda x: x, mk=lambda x, t: t):
                o = {}
                for r in set(da) | set(db):
                    c1 = key(da[r]) + (clk - sa.clock) if r in da else -10**9
                    c2 = key(db[r]) + (clk - sb.clock) if r in db else -10**9
                    o[r] = mk(da[r], c1) if c1 >= c2 else mk(db[r], c2)
                return o
            new.valu_wr = mg(sa.valu_wr, sb.valu_wr); new.trans_wr = mg(sa.trans_wr, sb.trans_wr)
            new.wide_rd = mg(sa.wide_rd, sb.wide_rd)
            new.mfma_wr = mg(sa.mfma_wr, sb.mfma_wr, key=lambda x: x[0], mk=lambda x, t: (t, x[1], None))
            new.mfma_rdC = mg(sa.mfma_rdC, sb.mfma_rdC, key=lambda x: x[0], mk=lambda x, t: (t, x[1]))
            new.m0_wr = max(sa.m0_wr + clk - sa.clock, sb.m0_wr + clk - sb.clock)
        else: raise ValueError(k)
    def pad(self, st, need):
        while need > 0:
            n = min(need, 16); self.emit(st, f"s_nop {n-1}", n); need -= n; self.stats["nops"] += 1
    def memdeps(self, i, st):
        touch = i.rd | i.wr
        vmN = None; lgN = None
        for idx, (t, d) in enumerate(st.vm):
            if d & touch: vmN = len(st.vm) - 1 - idx
        for idx, (k, t, d) in enumerate(st.lg):
            if d & touch: lgN = len(st.lg) - 1 - idx
        if lgN is not None and any(k == "smem" for k, _, _ in st.lg): lgN = 0
        self.need_wait(st, vmN, lgN)
    def ins(self, i, st):
        k = i.kind
        if k == "label": self.out.append(i.text); return
        if k == "nop":
            n = int(i.text.split()[1]) + 1; self.emit(st, i.text, n); return
        if k == "wait":
            m = re.search(r"vmcnt\((\d+)\)", i.text)
            if m: n = int(m.group(1)); st.vm = st.vm[len(st.vm) - n:] if 0 < n < len(st.vm) else ([] if n == 0 else st.vm)
            m = re.search(r"lgkmcnt\((\d+)\)", i.text)
            if m:
                n = int(m.group(1))
                if n == 0: st.lg = []
                elif not any(kk == "smem" for kk, _, _ in st.lg) and n < len(st.lg): st.lg = st.lg[len(st.lg) - n:]
            self.emit(st, i.text); return
        self.memdeps(i, st)
        if k in ("vmem_ld", "vmem_st", "dma") and len(st.vm) >= 63: self.need_wait(st, 62, None)
        if k in ("ds_rd", "ds_wr") and len(st.lg) >= 15: self.need_wait(st, None, 0 if any(kk == "smem" for kk, _, _ in st.lg) else 14)
        need = 0
        def req(prod_clock, n):
            nonlocal need
            need = max(need, n - (st.clock - prod_clock - 1))
        isvalu = k in ("valu", "trans", "permlane", "readlane")
        ismem = k in ("vmem_ld", "vmem_st", "dma", "ds_rd", "ds_wr")
        for r in i.rd:
            if r in st.valu_wr:
                pc = st.valu_wr[r]
                if r[0] in "va" and r != "vcc":
                    if k == "mfma": req(pc, 2)
                    if k == "permlane" or i.dpp: req(pc, 2)
                    if k == "readlane": req(pc, 1)
                else:
                    if isvalu or k == "mfma": req(pc, 4 if k == "readlane" else 2)
                    if k in ("vmem_ld", "vmem_st", "dma"): req(pc, 5)
                    if k in ("salu", "branch"): req(pc, 1 if r != "vcc" else 5 if k == "branch" else 1)
            if r in st.trans_wr and (isvalu or k == "mfma"): req(st.trans_wr[r], 2 if k == "mfma" else 1)
            if r in st.mfma_wr:
                pc, ps, dst = st.mfma_wr[r]
                if k == "mfma":
                    if i.srcC and r in i.srcC and not (r in set(x for x in i.rd) - set(i.srcC)):
                        if dst == i.srcC and ps == i.passes: pass
                        else: req(pc, MF_OVL[ps])
                    else: req(pc, MF_RAW[ps])
                elif isvalu or ismem: req(pc, MF_RAW[ps])
        for r in i.wr:
            if r in st.mfma_wr and (isvalu or k in ("vmem_ld", "ds_rd")): req(st.mfma_wr[r][0], MF_RAW[st.mfma_wr[r][1]])
            if r in st.mfma_wr and k == "mfma":
                pc, ps, dst = st.mfma_wr[r]
                if not (dst == tuple(sorted(i.wr, key=lambda x: int(x[1:]))) and ps == i.passes): req(pc, MF_OVL[ps])
            if r in st.mfma_rdC and isvalu: req(st.mfma_rdC[r][0], MF_WARC[st.mfma_rdC[r][1]])
            if r in st.wide_rd and (isvalu or k in ("mfma", "vmem_ld", "ds_rd")): req(st.wide_rd[r], 2)
        if k == "dma": req(st.m0_wr, 1)
        self.pad(st, need)
        c = st.clock
        self.emit(st, i.text); self.stats["n"] += 1
        for r in i.wr:
            st.valu_wr.pop(r, None); st.trans_wr.pop(r, None)
            if k != "mfma": st.mfma_wr.pop(r, None)
        if isvalu:
            for r in i.wr: st.valu_wr[r] = c
            if k == "trans":
                for r in i.wr: st.trans_wr[r] = c
        elif k == "mfma":
            dst = tuple(sorted(i.wr, key=lambda x: int(x[1:])))
            for r in i.wr: st.mfma_wr[r] = (c, i.passes, dst)
            for r in (i.srcC or ()): st.mfma_rdC[r] = (c, i.passes)
        elif k == "salu":
            if "m0" in i.wr: st.m0_wr = c
        if k in ("vmem_ld", "vmem_st", "dma"):
            st.vm.append((i.tag, set(i.wr))); st._vm_issued = getattr(st, "_vm_issued", 0) + 1
            if i.wide:
                for r in i.srcC: st.wide_rd[r] = c
        if k in ("ds_rd", "ds_wr"):
            st.lg.append(("ds", i.tag, set(i.wr))); st._lg_issued = getattr(st, "_lg_issued", 0) + 1
        if k == "smem":
            st.lg.append(("smem", i.tag, set(i.wr))); st._lg_issued = getattr(st, "_lg_issued", 0) + 1

def finalize(prog):
    f = Finalizer(); f.run(prog, State())
    return "\n".join(f.out) + "\n", f.stats

def weave(main, fill, per=2, start=0):
    out = []; fill = list(fill); n = 0
    for it in main:
        out.append(it)
        if isinstance(it, str) and it.startswith("v_mfma"):
            n += 1
            if n > start:
                for _ in range(per):
                    if fill: out.append(fill.pop(0))
    out.extend(fill)
    return out
```

```python
import sys
from gen_core import *
from asmlib import header, kernel_begin, kernel_desc, rodata_begin
NAME = "interleave_layers__sliding_local_dilated__dense_activation_relu__prompt_kernel"
KB = 1024
FLG, HFL, HALO, STATS, P0, P1, TSB = 0, 4096, 0x10000, 0x80000, 0x200000, 0x1000000, 0x3000000
WS_SIZE = 0x4000000
C0, C1 = 0x5bd1e995, 0x2545f491
TAB = 156*KB
CSQ, HS, CS1, CSP, RS = TAB, TAB+384, TAB+512, TAB+1024, TAB+3072
def WQ(s): return 48*KB + 6144*s if s < 8 else 6144*(s-8)
HIMG = 96*KB
KVX = 70*KB
WOG = [124*KB, 140*KB, 92*KB, 108*KB]
def W1A(s): return 7168*s
W2G = [112*KB, 128*KB, 0, 16*KB, 32*KB, 48*KB, 64*KB, 80*KB, 96*KB, 112*KB, 128*KB, 0, 16*KB, 32*KB]
RBASE = 92*KB
OB_WO = [124*KB, 140*KB, 92*KB]
OB_W2 = [96*KB, 112*KB, 128*KB]
SX, SWQ, SWO, SW1, SW2, SOUT, SWS = 4, 8, 12, 16, 20, 24, 28
sG, sC16, sC8, sRQ, sW, sXCC, sMODE = 32, 33, 34, 35, 36, 37, 38
sF0, sF1, sFoff = 39, 40, 41
sPUB = 42
sX, sH, sST = 44, 45, 46
sD0, sD1 = 47, 48
sGQ, sLQ, sG1, sL1, sG1s, sL1s, sG2, sGO, sL2 = 49, 50, 51, 52, 53, 54, 55, 56, 57
sHsrc, sHl = 58, 59
sHp, sHs = 60, 61
sTown = 62
sHF0, sHF1, sHFoff = 63, 64, 65
sHPUB = 66
sT = 68
sCNT = 80
sM = 82
sHM = 84
sTS = 86
sEPS, sINV = 88, 89
vL16 = 1
vT0, vT1, vTs = 2, 5, 8
vP0, vP1 = 10, 13
vDq, vD1, vD1s, vD2 = 16, 17, 18, 19
vE0, vE1, vFo, vHE0, vHE1, vHo = 20, 21, 22, 23, 24, 25
vRW, vRR = 26, 27
vKp, vVp, vKW, vKH = 30, 32, 34, 35
vBC, vBP = 36, 40
vXR = 44
vSt, vHalo, vRSw, vRSr, vCSr, vCSl, vOut, vHst = 60, 61, 62, 63, 64, 65, 66, 67
vONE = 68
vRf, vHA, vTSV, vHSa = 72, 73, 74, 75
vNM, vRSD = 76, 78
ACC, AF, TMP = 80, 144, 200

def lds(base3, addr):
    return v(base3 + (addr >> 16)), addr & 0xffff

def pk(op, dst, *srcs):
    txt = []; sel = []; selh = []; neg = []
    for k, r in srcs:
        n = k.startswith("n"); k = k[-1]
        if k == "p": assert r % 2 == 0; txt.append(v(r, 2)); sel.append(0); selh.append(1)
        else: txt.append(v(r & ~1, 2)); sel.append(r & 1); selh.append(r & 1)
        neg.append(int(n))
    assert dst % 2 == 0
    m = ""
    if any(sel): m += f" op_sel:[{','.join(map(str, sel))}]"
    if not all(selh): m += f" op_sel_hi:[{','.join(map(str, selh))}]"
    if any(neg): m += f" neg_lo:[{','.join(map(str, neg))}] neg_hi:[{','.join(map(str, neg))}]"
    return f"v_pk_{op}_f32 {v(dst, 2)}, {', '.join(txt)}{m}"

class K:
    def __init__(self, distinct=False, stamps=False, force_fallback=False):
        self.p = Prog(); self.distinct = distinct; self.stamps = stamps; self.nst = 0; self.names = []
        self.force_fallback = force_fallback
    def stamp(self, name):
        if not self.stamps: return
        p = self.p
        p.wait_lg_all()
        p(f"s_memtime {s(sTS,2)}\ns_waitcnt lgkmcnt(0)\nv_writelane_b32 {v(vTSV)}, {s(sTS)}, {self.nst}")
        self.names.append(name); self.nst += 1
    def setup(self):
        p = self.p
        p(f"s_cmp_ge_u32 s2, 256\ns_cbranch_scc1 L_END")
        for r, off in ((SX, 0), (SWQ, 8), (SWO, 16), (SW1, 32), (SW2, 40), (SOUT, 48), (SWS, 64)):
            p(f"s_load_dwordx2 {s(r,2)}, s[0:1], {off}")
        p(f"""
        s_getreg_b32 {s(sXCC)}, hwreg(HW_REG_XCC_ID, 0, 3)
        v_lshrrev_b32 v2, 6, v0
        v_and_b32 v0, 63, v0
        v_readfirstlane_b32 {s(sW)}, v2
        s_and_b32 {s(sT)}, s2, 7
        s_lshr_b32 {s(sT+1)}, s2, 3
        s_lshr_b32 {s(sT+2)}, {s(sT+1)}, 4
        s_lshl_b32 {s(sG)}, {s(sT)}, 1
        s_add_u32 {s(sG)}, {s(sG)}, {s(sT+2)}
        s_and_b32 {s(sC16)}, {s(sT+1)}, 15
        s_and_b32 {s(sC8)}, {s(sT+1)}, 7
        s_lshr_b32 {s(sRQ)}, {s(sC16)}, 3
        s_lshl_b32 {s(sTown)}, {s(sRQ)}, 2
        s_add_u32 {s(sTown)}, {s(sTown)}, {s(sW)}
        v_lshlrev_b32 {v(vL16)}, 4, v0
        v_mov_b32 {v(vTSV)}, 0
        s_waitcnt lgkmcnt(0)""")
        for r, sz in ((SX, 2048*1024), (SWQ, 512*3072), (SWO, 512*1024), (SW1, 512*3584), (SW2, 1792*1024), (SOUT, 2048*1024), (SWS, WS_SIZE)):
            p(f"s_and_b32 {s(r+1)}, {s(r+1)}, 0xffff\ns_mov_b32 {s(r+2)}, {sz}\ns_mov_b32 {s(r+3)}, 0x20000")
        t = TMP
        p(f"""
        v_and_b32 {v(t)}, 15, v0
        v_lshrrev_b32 {v(t+1)}, 4, v0
        v_lshrrev_b32 {v(t+2)}, 2, v0
        v_and_b32 {v(t+3)}, 3, v0""")
        p(f"""
        s_lshr_b32 {s(sT)}, {s(sTown)}, 1
        s_lshl_b32 {s(sT)}, {s(sT)}, 5
        s_and_b32 {s(sT+1)}, {s(sTown)}, 1
        s_add_u32 {s(sT)}, {s(sT)}, {s(sT+1)}
        s_lshl_b32 {s(sT+1)}, {s(sG)}, 7
        s_add_u32 {s(sT)}, {s(sT)}, {s(sT+1)}
        s_lshl_b32 {s(sT)}, {s(sT)}, 10
        s_lshl_b32 {s(sT+1)}, {s(sC8)}, 7
        s_add_u32 {s(sT)}, {s(sT)}, {s(sT+1)}
        v_and_b32 {v(t+4)}, 1, {v(t+1)}
        v_lshlrev_b32 {v(t+5)}, 5, {v(t+4)}
        v_lshrrev_b32 {v(t+6)}, 1, {v(t+1)}
        v_lshl_add_u32 {v(t+5)}, {v(t+6)}, 4, {v(t+5)}
        v_lshl_add_u32 {v(t+6)}, {v(t)}, 11, {v(t+5)}
        v_add_u32 {v(vOut)}, {s(sT)}, {v(t+6)}""")
        p(f"buffer_load_dwordx4 {v(ACC,4)}, {v(vOut)}, {s(SX,4)}, 0 offen", tag="x0")
        p(f"buffer_load_dwordx4 {v(ACC+4,4)}, {v(vOut)}, {s(SX,4)}, 0 offen offset:64", tag="x0")
        p(f"""
        v_and_b32 {v(t+7)}, 31, v0
        v_lshlrev_b32 {v(t+7)}, 3, {v(t+7)}
        s_lshl_b32 {s(sT)}, {s(sG)}, 8
        v_lshlrev_b32 {v(t+8)}, 3, {v(t)}
        v_add_u32 {v(vFo)}, {s(sT)}, {v(t+8)}
        s_add_u32 {s(sT+1)}, {s(sT)}, {HFL}
        s_add_u32 {s(sT+2)}, {s(sG)}, 15
        s_and_b32 {s(sT+2)}, {s(sT+2)}, 15
        s_lshl_b32 {s(sT+2)}, {s(sT+2)}, 8
        s_add_u32 {s(sT+2)}, {s(sT+2)}, {HFL}
        v_and_b32 {v(t+9)}, 7, v0
        v_lshlrev_b32 {v(t+9)}, 3, {v(t+9)}
        v_add_u32 {v(vHo)}, {s(sT+2)}, {v(t+9)}""")
        p(f"buffer_load_dwordx2 {v(vE0,2)}, {v(vFo)}, {s(SWS,4)}, 0 offen sc1", tag="ep")
        p(f"buffer_load_dwordx2 {v(t+10,2)}, {v(t+7)}, {s(SWS,4)}, {s(sT)} offen sc1", tag="ep")
        p(f"buffer_load_dwordx2 {v(t+12,2)}, {v(vHo)}, {s(SWS,4)}, 0 offen sc1", tag="ep")
        p(f"buffer_load_dwordx2 {v(t+14,2)}, {v(t+9)}, {s(SWS,4)}, {s(sT+1)} offen sc1", tag="ep")
        p(f"""
        s_lshl_b32 {s(sT+3)}, {s(sC16)}, 3
        s_add_u32 {s(sFoff)}, {s(sT)}, {s(sT+3)}
        s_add_u32 {s(sFoff)}, {s(sFoff)}, 128
        s_lshl_b32 {s(sT+3)}, {s(sC8)}, 3
        s_add_u32 {s(sHFoff)}, {s(sT+1)}, {s(sT+3)}
        s_add_u32 {s(sHFoff)}, {s(sHFoff)}, 128
        v_add_u32 {v(vFo)}, 128, {v(vFo)}""")
        p(f"""
        v_lshlrev_b32 {v(t+16)}, 6, {v(t+2)}
        v_lshl_add_u32 {v(t+16)}, {v(t+3)}, 3, {v(t+16)}
        v_lshl_add_u32 {v(vT0)}, {v(t+4)}, 5, {v(t+16)}
        v_xor_b32 {v(vT1)}, 32, {v(vT0)}
        v_add_u32 {v(vT0+1)}, 0x10000, {v(vT0)}
        v_add_u32 {v(vT0+2)}, 0x20000, {v(vT0)}
        v_add_u32 {v(vT1+1)}, 0x10000, {v(vT1)}
        v_add_u32 {v(vT1+2)}, 0x20000, {v(vT1)}
        v_lshlrev_b32 {v(vTs)}, 3, v0
        v_add_u32 {v(vTs+1)}, 0x10000, {v(vTs)}
        s_lshl_b32 {s(sL2)}, {s(sW)}, 12""")
        for i in range(3):
            p(f"v_add_u32 {v(vP0+i)}, {s(sL2)}, {v(vT0+i)}\nv_add_u32 {v(vP1+i)}, {s(sL2)}, {v(vT1+i)}")
        p(f"""
        v_lshrrev_b32 {v(t+16)}, 1, {v(t+3)}
        v_xor_b32 {v(t+16)}, {v(t+16)}, {v(t+4)}
        v_lshlrev_b32 {v(t+16)}, 5, {v(t+16)}
        v_and_b32 {v(t+17)}, 1, v0
        v_lshl_add_u32 {v(t+16)}, {v(t+17)}, 4, {v(t+16)}
        v_mul_u32_u24 {v(vDq)}, 3072, {v(t+2)}
        v_add_u32 {v(vDq)}, {v(vDq)}, {v(t+16)}
        v_mul_u32_u24 {v(vD1)}, 3584, {v(t+2)}
        v_add_u32 {v(vD1)}, {v(vD1)}, {v(t+16)}
        v_lshl_add_u32 {v(vD2)}, {v(t+2)}, 10, {v(t+16)}
        v_lshrrev_b32 {v(t+18)}, 1, v0
        v_mul_u32_u24 {v(vD1s)}, 3584, {v(t+18)}
        v_lshl_add_u32 {v(vD1s)}, {v(t+17)}, 4, {v(vD1s)}""")
        p(f"""
        s_mul_i32 {s(sGQ)}, {s(sW)}, {16*3072}
        s_lshl_b32 {s(sT)}, {s(sC16)}, 6
        s_add_u32 {s(sGQ)}, {s(sGQ)}, {s(sT)}
        s_lshr_b32 {s(sT)}, {s(sW)}, 1
        s_and_b32 {s(sT+1)}, {s(sW)}, 1
        s_mul_i32 {s(sLQ)}, {s(sT)}, 6144
        s_mul_i32 {s(sT+2)}, {s(sT+1)}, 3072
        s_add_u32 {s(sLQ)}, {s(sLQ)}, {s(sT+2)}
        s_mul_i32 {s(sL1)}, {s(sT)}, 7168
        s_add_u32 {s(sL1)}, {s(sL1)}, {s(sT+2)}
        s_mul_i32 {s(sL1s)}, {s(sW)}, 7168
        s_lshr_b32 {s(sT+3)}, {s(sC16)}, 1
        s_and_b32 {s(sT+4)}, {s(sC16)}, 1
        s_mul_i32 {s(sT+5)}, {s(sT+3)}, 448
        s_lshl_b32 {s(sT+6)}, {s(sT+4)}, 8
        s_add_u32 {s(sT+6)}, {s(sT+6)}, {s(sT+5)}
        s_mul_i32 {s(sG1)}, {s(sW)}, {16*3584}
        s_add_u32 {s(sG1)}, {s(sG1)}, {s(sT+6)}
        s_lshl_b32 {s(sT+6)}, {s(sT+4)}, 5
        s_add_u32 {s(sT+6)}, {s(sT+6)}, {s(sT+5)}
        s_add_u32 {s(sT+6)}, {s(sT+6)}, 192
        s_mul_i32 {s(sG1s)}, {s(sW)}, {32*3584}
        s_add_u32 {s(sG1s)}, {s(sG1s)}, {s(sT+6)}
        s_mul_i32 {s(sT+5)}, {s(sT+3)}, {7*1024}
        s_lshl_b32 {s(sT+6)}, {s(sT+4)}, 12
        s_add_u32 {s(sHp)}, {s(sT+5)}, {s(sT+6)}
        s_lshl_b32 {s(sT+6)}, {s(sT+4)}, 3
        s_add_u32 {s(sHs)}, {s(sT+5)}, {s(sT+6)}
        s_add_u32 {s(sHs)}, {s(sHs)}, {3*1024}
        s_lshl_b32 {s(sT+5)}, {s(sC8)}, 7
        s_mul_i32 {s(sG2)}, {s(sW)}, {448*1024}
        s_add_u32 {s(sG2)}, {s(sG2)}, {s(sT+5)}
        s_mul_i32 {s(sGO)}, {s(sW)}, {128*1024}
        s_add_u32 {s(sGO)}, {s(sGO)}, {s(sT+5)}
        s_mul_i32 {s(sHl)}, {s(sW)}, {4*1040}
        s_add_u32 {s(sHl)}, {s(sHl)}, {HIMG}
        s_lshl_b32 {s(sHsrc)}, {s(sT+1)}, 3
        s_xor_b32 {s(sT+5)}, {s(sT)}, 1
        s_add_u32 {s(sHsrc)}, {s(sHsrc)}, {s(sT+5)}
        s_lshl_b32 {s(sHsrc)}, {s(sHsrc)}, 10
        s_lshl_b32 {s(sX)}, {s(sG)}, 17
        s_add_u32 {s(sX)}, {s(sX)}, {P0}
        s_mul_i32 {s(sH)}, {s(sG)}, 0x70000
        s_add_u32 {s(sH)}, {s(sH)}, {P1}
        s_lshl_b32 {s(sST)}, {s(sG)}, 13
        s_add_u32 {s(sST)}, {s(sST)}, {STATS}
        s_cmp_eq_u32 {s(sW)}, 0
        s_cselect_b32 {s(sPUB)}, 1, 0
        s_mov_b32 {s(sPUB+1)}, 0
        s_and_b32 {s(sHPUB)}, {s(sPUB)}, {s(sRQ)}
        s_mov_b32 {s(sHPUB+1)}, 0
        s_and_b32 {s(sT+5)}, {s(sT)}, {s(sRQ)}
        s_cmp_eq_u32 {s(sT+5)}, 1
        s_cselect_b32 {s(sHM)}, 0xff00ff00, 0
        s_mov_b32 {s(sHM+1)}, {s(sHM)}
        s_mov_b32 {s(sEPS)}, 0x3727c5ac
        s_mov_b32 {s(sINV)}, 0x3b000000""")
        p(f"v_add_u32 {v(vRW)}, {s(sL2)}, {v(vL16)}\nv_add_u32 {v(vRW)}, {RBASE}, {v(vRW)}")
        for u in range(1, 4):
            p(f"""
            s_sub_u32 {s(sT+5)}, {s(sW)}, {u}
            s_and_b32 {s(sT+5)}, {s(sT+5)}, 3
            s_lshl_b32 {s(sT+5)}, {s(sT+5)}, 12
            s_add_u32 {s(sT+5)}, {s(sT+5)}, {RBASE}
            v_add_u32 {v(vRR+u-1)}, {s(sT+5)}, {v(vL16)}""")
        p(f"""
        s_add_u32 {s(sT+5)}, {s(sL2)}, {KVX}
        v_add_u32 {v(vKp)}, {s(sT+5)}, {v(vL16)}
        v_add_u32 {v(vKW)}, 4096, {v(vKp)}
        v_add_u32 {v(vVp)}, 8, {v(vKp)}
        v_add_u32 {v(vKp+1)}, 2048, {v(vKp)}
        v_add_u32 {v(vVp+1)}, 2048, {v(vVp)}
        v_xor_b32 {v(t+16)}, 128, {v(vL16)}
        v_add_u32 {v(t+16)}, {KVX}, {v(t+16)}
        v_xor_b32 {v(t+17)}, 512, {v(vL16)}
        v_add_u32 {v(t+17)}, {KVX+8}, {v(t+17)}
        s_cmp_eq_u32 {s(sW)}, 0
        s_cselect_b64 vcc, -1, 0
        v_cndmask_b32 {v(vKp+1)}, {v(vKp+1)}, {v(t+16)}, vcc
        v_cndmask_b32 {v(vVp+1)}, {v(vVp+1)}, {v(t+17)}, vcc
        s_lshl_b32 {s(sT+5)}, {s(sT+1)}, 10
        s_lshl_b32 {s(sT+6)}, {s(sT)}, 3
        s_add_u32 {s(sT+5)}, {s(sT+5)}, {s(sT+6)}
        s_add_u32 {s(sT+5)}, {s(sT+5)}, {KVX}
        v_add_u32 {v(vKH)}, {s(sT+5)}, {v(vL16)}""")
        p(f"""
        s_lshl_b32 {s(sT+5)}, {s(sT+1)}, 5
        v_xor_b32 {v(vHA)}, {s(sT+5)}, {v(vT0)}
        s_add_u32 {s(sT+5)}, {s(sT)}, 1
        s_lshl_b32 {s(sT+5)}, {s(sT+5)}, 10
        v_add_u32 {v(vHA)}, {s(sT+5)}, {v(vHA)}""")
        p(f"""
        s_or_b32 {s(sT+5)}, {s(sG)}, {s(sW)}
        s_cmp_eq_u32 {s(sT+5)}, 0
        s_cselect_b32 {s(sT+5)}, 100, 9
        v_lshlrev_b32 {v(t+16)}, 2, {v(t+1)}
        v_sub_u32 {v(t+16)}, {v(t)}, {v(t+16)}
        v_mov_b32 {v(t+18)}, 0xf149f2ca""")
        for r in range(4):
            p(f"""
            v_subrev_u32 {v(t+17)}, {r}, {v(t+16)}
            v_cmp_gt_u32 vcc, 8, {v(t+17)}
            v_cndmask_b32 {v(vBC+r)}, {v(t+18)}, 0, vcc
            v_add_u32 {v(t+17)}, {s(sT+5)}, {v(t+17)}
            v_cmp_ge_i32 vcc, 0, {v(t+17)}
            v_cndmask_b32 {v(vBP+r)}, {v(t+18)}, 0, vcc""")
        p(f"""
        v_lshlrev_b32 {v(vSt)}, 4, {v(t)}
        v_lshl_add_u32 {v(vSt)}, {v(t+4)}, 2, {v(vSt)}
        v_mul_u32_u24 {v(vHalo)}, 1040, {v(t)}
        v_lshl_add_u32 {v(vHalo)}, {v(t+1)}, 3, {v(vHalo)}
        v_add_u32 {v(vHalo)}, {HIMG}, {v(vHalo)}
        s_lshl_b32 {s(sT+5)}, {s(sW)}, 8
        s_add_u32 {s(sT+5)}, {s(sT+5)}, {RS}
        v_lshlrev_b32 {v(vCSl)}, 2, {v(t)}
        v_lshlrev_b32 {v(vCSr)}, 4, {v(t+1)}
        v_add_u32 {v(vRSw)}, {s(sT+5)}, {v(vCSl)}
        v_add_u32 {v(vRSr)}, {s(sT+5)}, {v(vCSr)}
        v_add_u32 {v(vCSl)}, {TAB}, {v(vCSl)}
        v_add_u32 {v(vCSr)}, {TAB}, {v(vCSr)}
        v_mul_u32_u24 {v(vHSa)}, 1040, {v(t+1)}
        v_lshl_add_u32 {v(vHSa)}, {v(t)}, 6, {v(vHSa)}
        v_add_u32 {v(vHSa)}, {s(sHl)}, {v(vHSa)}
        s_lshl_b32 {s(sT+5)}, {s(sG)}, 14
        s_add_u32 {s(sT+5)}, {s(sT+5)}, {HALO - 16*1024}
        s_lshl_b32 {s(sT+6)}, {s(sT+1)}, 10
        s_add_u32 {s(sT+5)}, {s(sT+5)}, {s(sT+6)}
        s_lshl_b32 {s(sT+6)}, {s(sC8)}, 7
        s_add_u32 {s(sT+5)}, {s(sT+5)}, {s(sT+6)}
        v_add_u32 {v(vHst)}, {s(sT+5)}, {v(t+6)}""")
        for i in range(4): p(f"v_mov_b32 {v(vONE+i)}, 0x3f803f80")
        p(f"""
        v_add_u32 {v(vE0)}, {C0}, {v(vE0)}
        v_add_u32 {v(vE1)}, {C1}, {v(vE1)}
        v_add_u32 {v(vHE0)}, {C0}, {v(t+12)}
        v_add_u32 {v(vHE1)}, {C1}, {v(t+13)}
        v_add_u32 {v(vHo)}, 128, {v(vHo)}
        v_readlane_b32 {s(sF0)}, {v(vE0)}, {s(sC16)}
        v_readlane_b32 {s(sF1)}, {v(vE1)}, {s(sC16)}
        v_readlane_b32 {s(sHF0)}, {v(t+14)}, {s(sC8)}
        v_readlane_b32 {s(sHF1)}, {v(t+15)}, {s(sC8)}
        s_add_u32 {s(sF0)}, {s(sF0)}, {s(sXCC)}
        s_add_u32 {s(sHF0)}, {s(sHF0)}, {C0}
        s_add_u32 {s(sHF1)}, {s(sHF1)}, {C1}""")
    def store_m(self, lines):
        p = self.p
        A = sub(p); B = sub(p)
        for l in lines:
            if l.startswith("buffer_store"): A(l, tag="st"); B(l + " sc1", tag="st")
            else: A(l); B(l)
        p(f"s_cmp_lg_u32 {s(sMODE)}, 0")
        p.ifelse("s_cbranch_scc1", A, B)
    def publish(self, stage, halo=False):
        p = self.p; t = TMP
        p(f"s_add_u32 {s(sT)}, {s(sF0)}, {8*stage}\nv_mov_b32 {v(t)}, {s(sT)}\nv_mov_b32 {v(t+1)}, {s(sF1)}")
        if halo: p(f"v_mov_b32 {v(t+2)}, {s(sHF0)}\nv_mov_b32 {v(t+3)}, {s(sHF1)}")
        p.wait_vm("st"); p.wait_lg_all()
        p("s_barrier")
        p(f"s_mov_b64 exec, {s(sPUB,2)}")
        l = f"buffer_store_dwordx2 {v(t,2)}, off, {s(SWS,4)}, {s(sFoff)}"
        if stage == 0: p(l, tag="fl")
        else: self.store_m([l])
        if halo:
            p(f"s_mov_b64 exec, {s(sHPUB,2)}")
            p(f"buffer_store_dwordx2 {v(t+2,2)}, off, {s(SWS,4)}, {s(sHFoff)} sc1", tag="fl")
        p("s_mov_b64 exec, -1")
    def poll(self, stage, halo=False):
        p = self.p; t = TMP + 4
        lp = p.newlabel("POLL"); ld = p.newlabel("PDONE"); ln = p.newlabel("PNOREP")
        off, e0, e1, st8 = (vHo, vHE0, vHE1, 0) if halo else (vFo, vE0, vE1, 8*stage)
        p(f"v_add_u32 {v(t+2)}, {st8}, {v(e0)}\ns_mov_b32 {s(sCNT)}, 0")
        rep = ""
        if stage == 0 and not halo:
            rep = f"""s_and_b32 {s(sT)}, {s(sCNT)}, 7
            s_cmp_eq_u32 {s(sT)}, 7
            s_cbranch_scc0 {ln}
            s_mov_b64 exec, {s(sPUB,2)}
            buffer_store_dwordx2 {v(TMP,2)}, off, {s(SWS,4)}, {s(sFoff)} sc1
            s_mov_b64 exec, -1
            {ln}:"""
        skip = ""
        if halo: skip = f"s_cmp_eq_u32 {s(sG)}, 0\ns_cbranch_scc1 {ld}"
        p.wait_vm_all()
        p.raw(f"""{skip}
        {lp}:
        buffer_load_dwordx2 {v(t,2)}, {v(off)}, {s(SWS,4)}, 0 offen sc1
        s_waitcnt vmcnt(0)
        v_sub_u32 {v(t)}, {v(t)}, {v(t+2)}
        v_cmp_eq_u32_e64 {s(sM,2)}, {v(t+1)}, {v(e1)}
        v_cmp_gt_u32 vcc, {128-st8}, {v(t)}
        s_nop 1
        s_and_b64 vcc, vcc, {s(sM,2)}
        s_cmp_eq_u64 vcc, -1
        s_cbranch_scc1 {ld}
        {rep}
        s_add_u32 {s(sCNT)}, {s(sCNT)}, 1
        s_cmp_lt_u32 {s(sCNT)}, 0x40000
        s_cbranch_scc1 {lp}
        s_branch L_END
        {ld}:""", clears_vm=True)
        if stage == 0 and not halo:
            p(f"""v_and_b32 {v(t)}, 7, {v(t)}
            v_cmp_ne_u32 vcc, {s(sXCC)}, {v(t)}
            s_cmp_lg_u64 vcc, 0
            s_cselect_b32 {s(sMODE)}, 1, 0""")
            if self.force_fallback: p(f"s_mov_b32 {s(sMODE)}, 1")
            if self.distinct: p(f"s_mov_b32 {s(sD0)}, 0x200000\ns_mov_b32 {s(sD1)}, 0x800000")
            else: p(f"s_lshl_b32 {s(sD0)}, {s(sMODE)}, 21\ns_lshl_b32 {s(sD1)}, {s(sMODE)}, 23")
    def dma(self, srd, vo, sg, goff, sl, loff, tag, imm=0):
        L = [f"s_add_u32 m0, {s(sl)}, {loff}", f"s_add_u32 {s(sT+8)}, {s(sg)}, {goff}"]
        return L, Ins(f"buffer_load_dwordx4 {v(vo)}, {s(srd,4)}, {s(sT+8)} offen{f' offset:{imm}' if imm else ''} lds", tag)
    def dma_wq(self, units):
        out = []
        for u in units:
            L, i0 = self.dma(SWQ, vDq, sGQ, u*64*3072, sLQ, WQ(2*u), "wq")
            out.append(L + [i0])
            out.append([Ins(f"buffer_load_dwordx4 {v(vDq)}, {s(SWQ,4)}, {s(sT+8)} offen offset:1024 lds", "wq")])
            out.append([Ins(f"buffer_load_dwordx4 {v(vDq)}, {s(SWQ,4)}, {s(sT+8)} offen offset:2048 lds", "wq")])
        return out
    def dma_w1(self, units, singles):
        out = []
        for u in units:
            for P in range(3):
                L, i0 = self.dma(SW1, vD1, sG1, u*64*3584 + 64*P, sL1, W1A(2*u) + 1024*P, "w1"); out.append(L + [i0])
        for u in singles:
            L, i0 = self.dma(SW1, vD1s, sG1s, u*128*3584, sL1s, W1A(4*u) + 6144, "w1"); out.append(L + [i0])
        return out
    def dma_priv(self, srd, sg, ks, group, tag):
        out = []
        for rd in range(2):
            for P in range(2):
                L, i0 = self.dma(srd, vD2, sg, (32*ks + 16*rd)*1024 + 64*P, sL2, group + rd*2048 + P*1024, tag); out.append(L + [i0])
        return out
    def stats_from(self, r, nm, rs):
        return [f"v_add_f32 {v(r)}, {v(r)}, {v(r+2)}", f"v_add_f32 {v(r+1)}, {v(r+1)}, {v(r+3)}",
                f"v_permlane16_swap_b32 {v(r)}, {v(r+1)}", f"v_add_f32 {v(r)}, {v(r)}, {v(r+1)}",
                f"v_mov_b32 {v(r+1)}, {v(r)}", f"v_permlane32_swap_b32 {v(r)}, {v(r+1)}", f"v_add_f32 {v(r)}, {v(r)}, {v(r+1)}",
                f"v_mov_b32 {v(r+1)}, {v(r)}", f"v_permlane16_swap_b32 {v(r)}, {v(r+1)}"] + self.stats_fin(r, r+1, nm, rs)
    def stats_fin(self, S, SS, nm, rs):
        return [f"v_mul_f32 {v(nm)}, 0xbb000000, {v(S)}", f"v_mul_f32 {v(SS)}, {s(sINV)}, {v(SS)}",
                f"v_fma_f32 {v(SS)}, -{v(nm)}, {v(nm)}, {v(SS)}", f"v_max_f32 {v(SS)}, 0, {v(SS)}",
                f"v_add_f32 {v(SS)}, {s(sEPS)}, {v(SS)}", f"v_rsq_f32 {v(rs)}, {v(SS)}"]
    def finish_x(self, k, final=False, halo=False):
        p = self.p; t = TMP
        for i in range(8): p(f"v_cvt_pk_bf16_f32 {v(t+i)}, {v(vXR+2*i)}, {v(vXR+2*i+1)}")
        if final:
            for a0, a1 in ((0, 2), (1, 3), (4, 6), (5, 7)): p(f"v_permlane16_swap_b32 {v(t+a0)}, {v(t+a1)}")
            p(f"buffer_store_dwordx4 {v(t,4)}, {v(vOut)}, {s(SOUT,4)}, 0 offen", tag="st")
            p(f"buffer_store_dwordx4 {v(t+4,4)}, {v(vOut)}, {s(SOUT,4)}, 0 offen offset:64", tag="st")
            return
        p(f"""s_lshl_b32 {s(sT)}, {s(sTown)}, 14
        s_lshl_b32 {s(sT+1)}, {s(sC8)}, 11
        s_add_u32 {s(sT)}, {s(sT)}, {s(sT+1)}
        s_add_u32 {s(sT)}, {s(sT)}, {s(sX)}""")
        xs = [f"buffer_store_dwordx4 {v(t,4)}, {v(vL16)}, {s(SWS,4)}, {s(sT)} offen",
              f"buffer_store_dwordx4 {v(t+4,4)}, {v(vL16)}, {s(SWS,4)}, {s(sT)} offen offset:1024"]
        if k == 0:
            for l in xs: p(l + " sc1", tag="st")
        else: self.store_m(xs)
        a = t + 8
        p(pk("add", a, ("p", vXR), ("p", vXR+2))); p(pk("mul", a+2, ("p", vXR), ("p", vXR)))
        p(pk("fma", a+2, ("p", vXR+2), ("p", vXR+2), ("p", a+2)))
        for i in range(2, 8):
            p(pk("add", a, ("p", a), ("p", vXR+2*i))); p(pk("fma", a+2, ("p", vXR+2*i), ("p", vXR+2*i), ("p", a+2)))
        p(f"""v_add_f32 {v(a)}, {v(a)}, {v(a+1)}
        v_add_f32 {v(a+1)}, {v(a+2)}, {v(a+3)}
        v_permlane16_swap_b32 {v(a)}, {v(a+1)}
        v_add_f32 {v(a)}, {v(a)}, {v(a+1)}
        v_mov_b32 {v(a+1)}, {v(a)}
        v_permlane32_swap_b32 {v(a)}, {v(a+1)}
        v_add_f32 {v(a)}, {v(a)}, {v(a+1)}
        s_lshl_b32 {s(sT)}, {s(sTown)}, 10
        s_lshr_b32 {s(sT+1)}, {s(sC8)}, 1
        s_lshl_b32 {s(sT+1)}, {s(sT+1)}, 8
        s_add_u32 {s(sT)}, {s(sT)}, {s(sT+1)}
        s_and_b32 {s(sT+1)}, {s(sC8)}, 1
        s_lshl_b32 {s(sT+1)}, {s(sT+1)}, 3
        s_add_u32 {s(sT)}, {s(sT)}, {s(sT+1)}
        s_add_u32 {s(sT)}, {s(sT)}, {s(sST)}""")
        l = f"buffer_store_dword {v(a)}, {v(vSt)}, {s(SWS,4)}, {s(sT)} offen"
        if k == 0: p(l + " sc1", tag="st")
        else: self.store_m([l])
        if halo:
            b = t + 12
            for i in range(8): p(f"v_mov_b32 {v(b+i)}, {v(t+i)}")
            for a0, a1 in ((0, 2), (1, 3), (4, 6), (5, 7)): p(f"v_permlane16_swap_b32 {v(b+a0)}, {v(b+a1)}")
            p(f"s_mov_b64 exec, {s(sHM,2)}")
            p(f"buffer_store_dwordx4 {v(b,4)}, {v(vHst)}, {s(SWS,4)}, 0 offen sc1", tag="st")
            p(f"buffer_store_dwordx4 {v(b+4,4)}, {v(vHst)}, {s(SWS,4)}, 0 offen offset:64 sc1", tag="st")
            p("s_mov_b64 exec, -1")
        for i in range(8):
            p(f"v_lshlrev_b32 {v(vXR+2*i)}, 16, {v(t+i)}\nv_and_b32 {v(vXR+2*i+1)}, 0xffff0000, {v(t+i)}")
    def load_x(self):
        p = self.p
        p(f"""s_lshl_b32 {s(sT)}, {s(sW)}, 11
        s_add_u32 {s(sT)}, {s(sT)}, {s(sST)}
        s_lshl_b32 {s(sT+1)}, {s(sW)}, 15
        s_add_u32 {s(sT+1)}, {s(sT+1)}, {s(sX)}
        s_add_u32 {s(sT+2)}, {s(sT+1)}, 16384""")
        p(f"buffer_load_dwordx4 {v(TMP+8,4)}, {v(vL16)}, {s(SWS,4)}, {s(sT)} offen sc1", tag="stt")
        p(f"buffer_load_dwordx4 {v(TMP+12,4)}, {v(vL16)}, {s(SWS,4)}, {s(sT)} offen offset:1024 sc1", tag="stt")
        for sk in range(16):
            if sk and sk % 4 == 0: p(f"s_add_u32 {s(sT+1)}, {s(sT+1)}, 4096\ns_add_u32 {s(sT+2)}, {s(sT+2)}, 4096")
            for Tl in range(2):
                p(f"buffer_load_dwordx4 {a_((sk*2+Tl)*4,4)}, {v(vL16)}, {s(SWS,4)}, {s(sT+1+Tl)} offen offset:{(sk%4)*1024} sc1", tag="xb")
    def trpair(self, dst, b0, b1, addr, stride_rd):
        out = []
        for e, b in ((0, b0), (1, b1)):
            for rd in range(2):
                r, o = lds(b, addr + rd*stride_rd)
                out.append(f"ds_read_b64_tr_b16 {v(dst + 4*e + 2*rd, 2)}, {r} offset:{o}")
        return out
    def stage0(self):
        p = self.p
        for a0, a1 in ((0, 2), (1, 3), (4, 6), (5, 7)): p(f"v_permlane16_swap_b32 {v(ACC+a0)}, {v(ACC+a1)}")
        for i in range(8):
            p(f"v_lshlrev_b32 {v(vXR+2*i)}, 16, {v(ACC+i)}\nv_and_b32 {v(vXR+2*i+1)}, 0xffff0000, {v(ACC+i)}")
        self.finish_x(0)
        self.publish(0)
        self.pretouch(True)
        for d in self.dma_wq(range(8)): p.add(d)
    def pretouch(self, stats):
        p = self.p; t = TMP + 20
        p(f"""s_mul_i32 {s(sT)}, {s(sC16)}, {28*1024}
        s_mul_i32 {s(sT+1)}, {s(sW)}, {7*1024}
        s_add_u32 {s(sT)}, {s(sT)}, {s(sT+1)}
        s_add_u32 {s(sT)}, {s(sT)}, {s(sH)}
        v_lshlrev_b32 {v(t)}, 3, {v(vL16)}""")
        p(f"buffer_load_dword {v(t+1)}, {v(t)}, {s(SWS,4)}, {s(sT)} offen sc1", tag="pt")
        if stats:
            p(f"""s_lshl_b32 {s(sT)}, {s(sW)}, 17
            s_add_u32 {s(sT)}, {s(sT)}, {s(sST)}""")
            p(f"buffer_load_dword {v(t+2)}, {v(t)}, {s(SWS,4)}, {s(sT)} offen sc1", tag="pt")
    def csum_pass(self, base_expr_lines, ntile_pairs, blk, swapped_pairs, single):
        p = self.p; R = TMP + 16; b0, b1, bs = TMP + 8, TMP + 9, TMP + 10
        p(base_expr_lines)
        p(f"v_add_u32 {v(b0)}, {s(sT)}, {v(vT0)}\nv_add_u32 {v(b1)}, {s(sT)}, {v(vT1)}\nv_add_u32 {v(bs)}, {s(sT)}, {v(vTs)}")
        for n in range(4):
            buf = AF + (n & 1)*28
            for P in range(ntile_pairs):
                for e, b in ((0, b0), (1, b1)):
                    for rd in range(2):
                        p(f"ds_read_b64_tr_b16 {v(buf + 8*P + 4*e + 2*rd, 2)}, {v(b)} offset:{n*blk + rd*3072 + P*1024}")
            if single:
                for rd in range(2): p(f"ds_read_b64_tr_b16 {v(buf + 24 + 2*rd, 2)}, {v(bs)} offset:{n*blk + 6144 + rd*512}")
            nt = 2*ntile_pairs + (1 if single else 0)
            for ti in range(nt):
                c = "0" if n == 0 else v(R+4*ti, 4)
                if (ti >> 1) in swapped_pairs: p(f"v_mfma_f32_16x16x32_bf16 {v(R+4*ti,4)}, {v(vONE,4)}, {v(buf+4*ti,4)}, {c}")
                else: p(f"v_mfma_f32_16x16x32_bf16 {v(R+4*ti,4)}, {v(buf+4*ti,4)}, {v(vONE,4)}, {c}")
        p(f"s_lshl_b32 {s(sT)}, {s(sW)}, 9\nv_add_u32 {v(b0)}, {s(sT)}, {v(vCSr)}\nv_add_u32 {v(b1)}, {s(sT)}, {v(vCSl)}")
        p(f"s_mov_b32 {s(sM)}, 0x00010001\ns_mov_b32 {s(sM+1)}, 0x00010001\ns_mov_b64 exec, {s(sM,2)}")
        for ti in range(nt):
            if (ti >> 1) not in swapped_pairs: p(f"ds_write_b128 {v(b0)}, {v(R+4*ti,4)} offset:{CSP-TAB + ti*64}")
        if swapped_pairs:
            p("s_mov_b64 exec, 0xffff")
            for ti in range(nt):
                if (ti >> 1) in swapped_pairs: p(f"ds_write_b32 {v(b1)}, {v(R+4*ti)} offset:{CSP-TAB + ti*64}")
        p("s_mov_b64 exec, -1")
    def csum_get(self, first, nreg_tiles, nlane_tiles, R, final_off):
        p = self.p; t = AF
        if not first:
            for ti in range(nreg_tiles): p(f"ds_read_b128 {v(R+4*ti,4)}, {v(vCSr)} offset:{final_off + ti*64}")
            for k in range(nlane_tiles): p(f"ds_read_b32 {v(R+4*nreg_tiles+k)}, {v(vCSl)} offset:{final_off + (nreg_tiles+k)*64}")
            return
        for ti in range(nreg_tiles):
            p(f"ds_read_b128 {v(R+4*ti,4)}, {v(vCSr)} offset:{CSP-TAB + ti*64}")
            for w in range(1, 4): p(f"ds_read_b128 {v(t+4*(w-1),4)}, {v(vCSr)} offset:{CSP-TAB + w*512 + ti*64}")
            for w in range(1, 4):
                for h in range(2): p(pk("add", R+4*ti+2*h, ("p", R+4*ti+2*h), ("p", t+4*(w-1)+2*h)))
            p(f"ds_write_b128 {v(vCSr)}, {v(R+4*ti,4)} offset:{final_off + ti*64}")
        for k in range(nlane_tiles):
            d = R + 4*nreg_tiles + k; ti = nreg_tiles + k
            p(f"ds_read_b32 {v(d)}, {v(vCSl)} offset:{CSP-TAB + ti*64}")
            for w in range(1, 4): p(f"ds_read_b32 {v(t+w)}, {v(vCSl)} offset:{CSP-TAB + w*512 + ti*64}")
            for w in range(1, 4): p(f"v_add_f32 {v(d)}, {v(d)}, {v(t+w)}")
            p(f"ds_write_b32 {v(vCSl)}, {v(d)} offset:{final_off + ti*64}")
    def qkv(self, layer):
        p = self.p
        st = 0 if layer == 0 else 4
        self.poll(st)
        if layer == 1: self.poll(0, halo=True)
        p("s_barrier")
        self.stamp(f"qkv{layer}_go")
        self.load_x()
        srd = SX if layer == 0 else SWS
        if layer == 0: p(f"s_lshl_b32 {s(sT)}, {s(sG)}, 17\ns_sub_u32 {s(sT)}, {s(sT)}, 16384")
        else: p(f"s_lshl_b32 {s(sT)}, {s(sG)}, 14\ns_add_u32 {s(sT)}, {s(sT)}, {HALO - 16384}")
        p(f"s_add_u32 {s(sT)}, {s(sT)}, {s(sHsrc)}\ns_cmp_eq_u32 {s(sG)}, 0\ns_cselect_b32 {s(sT)}, 0x40000000, {s(sT)}")
        for n in range(4):
            L, i0 = self.dma(srd, vL16, sT, n*2048, sHl, n*1040, "halo"); p.add(L + [i0])
        if layer == 0:
            p(f"""s_sub_u32 {s(sT)}, {s(sF0)}, {s(sXCC)}
            s_add_u32 {s(sT)}, {s(sT)}, {(0x1000 - C0) & 0xffffffff}
            s_add_u32 {s(sT+1)}, {s(sF1)}, {(0x10 - C1) & 0xffffffff}
            v_mov_b32 {v(TMP)}, {s(sT)}
            v_mov_b32 {v(TMP+1)}, {s(sT+1)}
            s_sub_u32 {s(sT+2)}, {s(sFoff)}, 128
            s_mov_b64 exec, {s(sPUB,2)}""")
            p(f"buffer_store_dwordx2 {v(TMP,2)}, off, {s(SWS,4)}, {s(sT+2)} sc1", tag="ep")
            p("s_mov_b64 exec, -1")
        Q = lambda T, h: ACC + (T*2+h)*4
        Kk = lambda T, h: ACC + 16 + (T*2+h)*4
        V = lambda T, h: ACC + 32 + (T*2+h)*4
        HA = ACC + 48
        def reads(sk):
            out = []
            for P in range(3): out += self.trpair(AF + (sk & 1)*28 + 8*P, vT0, vT1, WQ(sk) + P*1024, 3072)
            return out
        p.add(reads(0))
        stat_fill = self.stats_from(TMP+8, vNM, vRSD) + self.stats_from(TMP+12, vNM+1, vRSD+1)
        for Tl in range(2):
            stat_fill += [f"ds_write_b32 {v(vRSw)}, {v(vNM+Tl)} offset:{Tl*128}", f"ds_write_b32 {v(vRSw)}, {v(vRSD+Tl)} offset:{Tl*128+64}"]
        for sk in range(16):
            buf = AF + (sk & 1)*28
            main = []
            for P in range(3):
                for h in range(2):
                    for Tl in range(2):
                        d = (Q, Kk, V)[P](Tl, h); c = "0" if sk == 0 else v(d, 4)
                        A = v(buf + 8*P + 4*h, 4); B = a_((sk*2+Tl)*4, 4)
                        if P == 2: A, B = B, A
                        main.append(f"v_mfma_f32_16x16x32_bf16 {v(d,4)}, {A}, {B}, {c}")
            fill = reads(sk+1) if sk < 15 else []
            if sk >= 2:
                n = min(len(stat_fill), 6); fill2 = stat_fill[:n]; stat_fill = stat_fill[n:]
                fill = [x for pr in zip(fill, fill2 + [None]*12) for x in pr if x is not None] if fill else fill2
                p.add(weave(main, fill, per=2))
            else:
                p.add(weave(main, fill, per=1))
        assert not stat_fill
        self.stamp(f"qkv{layer}_loop")
        if layer == 0:
            self.csum_pass(f"""s_and_b32 {s(sT)}, {s(sW)}, 1
            s_mul_i32 {s(sT)}, {s(sT)}, 24576
            s_cmp_lt_u32 {s(sW)}, 2
            s_cselect_b32 {s(sT+1)}, {48*KB}, 0
            s_add_u32 {s(sT)}, {s(sT)}, {s(sT+1)}""", 3, 6144, {2}, False)
        p.wait_vm("halo")
        t = TMP + 8
        for n in range(4): p(f"ds_read_b128 {v(AF+4*n,4)}, {v(vHSa)} offset:{16*n}")
        p(f"v_mov_b32 {v(t)}, 0\nv_mov_b32 {v(t+1)}, 0\nv_mov_b32 {v(t+2)}, 0\nv_mov_b32 {v(t+3)}, 0")
        for n in range(16):
            p(f"v_dot2_f32_bf16 {v(t+2*(n&1))}, {v(AF+n)}, {v(vONE)}, {v(t+2*(n&1))}")
            p(f"v_dot2_f32_bf16 {v(t+1+2*(n&1))}, {v(AF+n)}, {v(AF+n)}, {v(t+1+2*(n&1))}")
        p(f"s_nop 2\nv_add_f32 {v(t)}, {v(t)}, {v(t+2)}\nv_add_f32 {v(t+1)}, {v(t+1)}, {v(t+3)}")
        for r in (8, 4, 2, 1):
            p(f"v_add_f32_dpp {v(t)}, {v(t)}, {v(t)} row_ror:{r} row_mask:0xf bank_mask:0xf")
            p(f"v_add_f32_dpp {v(t+1)}, {v(t+1)}, {v(t+1)} row_ror:{r} row_mask:0xf bank_mask:0xf")
        p.add(self.stats_fin(t, t+1, t+2, t+3))
        p(f"""s_lshl_b32 {s(sT)}, {s(sW)}, 4
        s_add_u32 {s(sT)}, {s(sT)}, {HS}
        v_lshrrev_b32 {v(t+4)}, 8, {v(vL16)}
        v_lshl_add_u32 {v(t+4)}, {v(t+4)}, 2, {s(sT)}
        ds_write_b32 {v(t+4)}, {v(t+2)}
        ds_write_b32 {v(t+4)}, {v(t+3)} offset:64""")
        p.wait_lg_all(); p("s_barrier")
        p(f"v_add_u32 {v(t)}, 0x10000, {v(vHA)}")
        def halo_arm(isV):
            q = sub(p)
            for half in range(2):
                for sk in range(8*half, 8*half+8):
                    b = AF + (sk & 7)*4; a = WQ(sk)
                    r = v(t) if a >= 0x10000 else v(vHA)
                    q(f"ds_read2_b64 {a_(128 + (sk&7)*4, 4)}, {v(vHalo)} offset0:{8*sk} offset1:{8*sk+4}")
                    q(f"ds_read_b64_tr_b16 {v(b,2)}, {r} offset:{a & 0xffff}")
                    q(f"ds_read_b64_tr_b16 {v(b+2,2)}, {r} offset:{(a & 0xffff) + 3072}")
                for sk in range(8*half, 8*half+8):
                    A = v(AF + (sk & 7)*4, 4); B = a_(128 + (sk&7)*4, 4)
                    if isV: A, B = B, A
                    q(f"v_mfma_f32_16x16x32_bf16 {v(HA,4)}, {A}, {B}, {'0' if sk == 0 else v(HA,4)}")
            return q
        p(f"s_cmp_ge_u32 {s(sW)}, 2")
        p.ifelse("s_cbranch_scc1", halo_arm(False), halo_arm(True))
        CS = TMP + 16
        self.csum_get(layer == 0, 4, 2, CS, CSQ - TAB)
        VS = TMP + 36
        for Tl in range(2):
            p(f"ds_read_b128 {v(VS+8*Tl,4)}, {v(vRSr)} offset:{Tl*128}\nds_read_b128 {v(VS+8*Tl+4,4)}, {v(vRSr)} offset:{Tl*128+64}")
        hs = TMP + 8
        A_ = sub(p); B_ = sub(p)
        A_(f"ds_read_b32 {v(hs)}, {v(vCSl)} offset:{HS-TAB}\nds_read_b32 {v(hs+1)}, {v(vCSl)} offset:{HS-TAB+64}")
        A_(f"s_and_b32 {s(sT)}, {s(sW)}, 1\ns_cmp_eq_u32 {s(sT)}, 1\ns_cselect_b64 vcc, -1, 0")
        for r in range(4): A_(f"v_cndmask_b32 {v(hs+4+r)}, {v(CS+8+r)}, {v(CS+12+r)}, vcc")
        for h in range(2):
            A_(pk("fma", HA+2*h, ("p", hs+4+2*h), ("b", hs), ("p", HA+2*h))); A_(pk("mul", HA+2*h, ("p", HA+2*h), ("b", hs+1)))
        A_.wait_lg_all()
        B_(f"ds_read_b128 {v(hs,4)}, {v(vCSr)} offset:{HS-TAB}\nds_read_b128 {v(hs+4,4)}, {v(vCSr)} offset:{HS-TAB+64}")
        B_(f"s_and_b32 {s(sT)}, {s(sW)}, 1\ns_cmp_eq_u32 {s(sT)}, 1\ns_cselect_b64 vcc, -1, 0")
        B_(f"v_cndmask_b32 {v(TMP+34)}, {v(CS+16)}, {v(CS+17)}, vcc")
        for h in range(2):
            B_(pk("fma", HA+2*h, ("p", hs+2*h), ("b", TMP+34), ("p", HA+2*h))); B_(pk("mul", HA+2*h, ("p", HA+2*h), ("p", hs+4+2*h)))
        B_.wait_lg_all()
        p(f"s_cmp_ge_u32 {s(sW)}, 2")
        p.ifelse("s_cbranch_scc1", A_, B_)
        p.wait_lg_all(); p("s_barrier")
        self.stamp(f"qkv{layer}_B")
        dl = []
        for ks in range(4): dl += self.dma_priv(SWO, sGO, ks, WOG[ks], "wo")
        dl += self.dma_w1(range(5), range(2))
        for d in dl: p.add(d)
        p(f"v_cvt_pk_bf16_f32 {v(HA)}, {v(HA)}, {v(HA+1)}\nv_cvt_pk_bf16_f32 {v(HA+1)}, {v(HA+2)}, {v(HA+3)}")
        p(f"ds_write_b64 {v(vKH)}, {v(HA,2)}")
        RQ = TMP + 8
        for Tl in range(2): p(f"v_mul_f32 {v(RQ+Tl)}, 0x3eb8aa3b, {v(vRSD+Tl)}")
        QP = lambda T, h: AF + (T*2+h)*2
        KP = lambda T, h: AF + 8 + (T*2+h)*2
        VV = lambda T, h: AF + 16 + (T*2+h)*4
        KR = lambda T, h: AF + 32 + (T*2+h)*2
        for Tl in range(2):
            for h in range(2):
                for hh in range(2):
                    p(pk("fma", Kk(Tl,h)+2*hh, ("p", CS+8+4*h+2*hh), ("b", vNM+Tl), ("p", Kk(Tl,h)+2*hh)))
                    p(pk("fma", V(Tl,h)+2*hh, ("p", VS+8*Tl+2*hh), ("b", CS+16+h), ("p", V(Tl,h)+2*hh)))
                for hh in range(2):
                    p(pk("mul", Kk(Tl,h)+2*hh, ("p", Kk(Tl,h)+2*hh), ("b", vRSD+Tl)))
                    p(pk("mul", V(Tl,h)+2*hh, ("p", V(Tl,h)+2*hh), ("p", VS+8*Tl+4+2*hh)))
                for hh in range(2):
                    p(f"v_cvt_pk_bf16_f32 {v(KP(Tl,h)+hh)}, {v(Kk(Tl,h)+2*hh)}, {v(Kk(Tl,h)+2*hh+1)}")
                    p(f"v_cvt_pk_bf16_f32 {v(VV(Tl,h)+2+hh)}, {v(V(Tl,h)+2*hh)}, {v(V(Tl,h)+2*hh+1)}")
                o = (Tl*2+h)*128
                if o < 256: p(f"ds_write2_b64 {v(vKW)}, {v(KP(Tl,h),2)}, {v(VV(Tl,h)+2,2)} offset0:{o} offset1:{o+1}")
                else:
                    p(f"ds_write_b64 {v(vKW)}, {v(KP(Tl,h),2)} offset:{o*8}\nds_write_b64 {v(vKW)}, {v(VV(Tl,h)+2,2)} offset:{o*8+8}")
        p.wait_lg_all(); p("s_barrier")
        for Tl in range(2):
            for h in range(2):
                p(f"ds_read_b64 {v(KR(Tl,h),2)}, {v(vKp+Tl)} offset:{h*1024}\nds_read_b64 {v(VV(Tl,h),2)}, {v(vVp+Tl)} offset:{h*1024}")
        for Tl in range(2):
            for h in range(2):
                for hh in range(2): p(pk("fma", Q(Tl,h)+2*hh, ("p", CS+4*h+2*hh), ("b", vNM+Tl), ("p", Q(Tl,h)+2*hh)))
                for hh in range(2): p(pk("mul", Q(Tl,h)+2*hh, ("p", Q(Tl,h)+2*hh), ("b", RQ+Tl)))
                for hh in range(2): p(f"v_cvt_pk_bf16_f32 {v(QP(Tl,h)+hh)}, {v(Q(Tl,h)+2*hh)}, {v(Q(Tl,h)+2*hh+1)}")
        U = [(0,0),(0,1),(1,0),(1,1)]
        S = lambda u: ACC + 16 + u*8
        for u, (Tl, h) in enumerate(U):
            p(f"v_mfma_f32_16x16x16_bf16 {v(S(u)+4,4)}, {v(KP(Tl,h),2)}, {v(QP(Tl,h),2)}, {v(vBC,4)}")
            p(f"v_mfma_f32_16x16x16_bf16 {v(S(u),4)}, {v(KR(Tl,h),2)}, {v(QP(Tl,h),2)}, {v(vBP,4)}")
        M = TMP + 10
        for u in range(4):
            p(f"""v_max3_f32 {v(M+u)}, {v(S(u))}, {v(S(u)+1)}, {v(S(u)+2)}
            v_max3_f32 {v(M+4+u)}, {v(S(u)+3)}, {v(S(u)+4)}, {v(S(u)+5)}
            v_max3_f32 {v(M+u)}, {v(M+u)}, {v(S(u)+6)}, {v(S(u)+7)}""")
        for u in range(4): p(f"v_max_f32 {v(M+u)}, {v(M+u)}, {v(M+4+u)}")
        p(f"""v_permlane16_swap_b32 {v(M)}, {v(M+1)}
        v_permlane16_swap_b32 {v(M+2)}, {v(M+3)}
        v_max_f32 {v(M)}, {v(M)}, {v(M+1)}
        v_max_f32 {v(M+2)}, {v(M+2)}, {v(M+3)}
        v_permlane32_swap_b32 {v(M)}, {v(M+2)}
        v_max_f32 {v(M)}, {v(M)}, {v(M+2)}
        v_mov_b32 {v(M+2)}, {v(M)}
        v_permlane32_swap_b32 {v(M)}, {v(M+2)}
        v_mov_b32 {v(M+1)}, {v(M)}
        v_mov_b32 {v(M+3)}, {v(M+2)}
        v_permlane16_swap_b32 {v(M)}, {v(M+1)}
        v_permlane16_swap_b32 {v(M+2)}, {v(M+3)}""")
        PP = lambda u: ACC + u*4
        for u in range(4):
            for hh in range(4): p(pk("add", S(u)+2*hh, ("p", S(u)+2*hh), ("nb", M+u)))
        for u in range(4):
            for r in range(8): p(f"v_exp_f32 {v(S(u)+r)}, {v(S(u)+r)}")
            for hh in range(4): p(f"v_cvt_pk_bf16_f32 {v(PP(u)+hh)}, {v(S(u)+2*hh)}, {v(S(u)+2*hh+1)}")
        O = lambda u: TMP + 16 + u*4
        SM = lambda u: TMP + 32 + u*4
        for u, (Tl, h) in enumerate(U):
            p(f"v_mfma_f32_16x16x32_bf16 {v(SM(u),4)}, {v(vONE,4)}, {v(PP(u),4)}, 0")
            p(f"v_mfma_f32_16x16x32_bf16 {v(O(u),4)}, {v(VV(Tl,h),4)}, {v(PP(u),4)}, 0")
        for u in range(4): p(f"v_rcp_f32 {v(SM(u))}, {v(SM(u))}")
        OP = TMP + 48
        for u in range(4):
            for hh in range(2): p(pk("mul", O(u)+2*hh, ("p", O(u)+2*hh), ("b", SM(u))))
            for hh in range(2): p(f"v_cvt_pk_bf16_f32 {v(OP+2*u+hh)}, {v(O(u)+2*hh)}, {v(O(u)+2*hh+1)}")
        p(f"""s_mul_i32 {s(sT)}, {s(sW)}, {2*57344}
        s_lshl_b32 {s(sT+1)}, {s(sC16)}, 10
        s_add_u32 {s(sT)}, {s(sT)}, {s(sT+1)}
        s_add_u32 {s(sT)}, {s(sT)}, {s(sH)}
        s_add_u32 {s(sT+1)}, {s(sT)}, 57344""")
        self.store_m([f"buffer_store_dwordx4 {v(OP+4*Tl,4)}, {v(vL16)}, {s(SWS,4)}, {s(sT+Tl)} offen" for Tl in range(2)])
        self.stamp(f"qkv{layer}_attn")
        self.publish(st + 1)
        for d in self.dma_w1([5], [2]): p.add(d)
    def ksplit(self, layer, which):
        p = self.p
        isW2 = which == "w2"
        nk = 14 if isW2 else 4
        st = 4*layer + (3 if isW2 else 1)
        groups = W2G if isW2 else WOG; ob = OB_W2 if isW2 else OB_WO
        self.poll(st)
        self.stamp(f"{which}{layer}_go")
        if not isW2 and layer == 1:
            p(f"""v_add_u32 {v(TMP)}, {(0x1000 - C0) & 0xffffffff}, {v(vHE0)}
            v_add_u32 {v(TMP+1)}, {(0x10 - C1) & 0xffffffff}, {v(vHE1)}
            v_subrev_u32 {v(TMP+2)}, 128, {v(vHo)}
            s_or_b32 {s(sT)}, {s(sC16)}, {s(sW)}
            s_cmp_eq_u32 {s(sT)}, 0
            s_cselect_b32 {s(sM)}, 0xff, 0
            s_mov_b32 {s(sM+1)}, 0
            s_mov_b64 exec, {s(sM,2)}""")
            p(f"buffer_store_dwordx2 {v(TMP,2)}, {v(TMP+2)}, {s(SWS,4)}, 0 offen sc1", tag="ep")
            p("s_mov_b64 exec, -1")
        for u in range(4):
            p(f"""s_add_u32 {s(sT+4)}, {s(sW)}, {u}
            s_and_b32 {s(sT+4)}, {s(sT+4)}, 3
            s_lshl_b32 {s(sT+5)}, {s(sRQ)}, 2
            s_add_u32 {s(sT+4)}, {s(sT+4)}, {s(sT+5)}
            s_mul_i32 {s(sT+u)}, {s(sT+4)}, 57344
            s_mul_i32 {s(sT+4)}, {s(sW)}, {nk*1024}
            s_add_u32 {s(sT+u)}, {s(sT+u)}, {s(sT+4)}
            s_add_u32 {s(sT+u)}, {s(sT+u)}, {s(sH)}""")
        def bload(ks):
            out = []
            if ks and ks % 4 == 0: out.append([f"s_add_u32 {s(sT+u)}, {s(sT+u)}, 4096" for u in range(4)])
            for u in range(4):
                out.append(Ins(f"buffer_load_dwordx4 {a_((ks*4+u)*4,4)}, {v(vL16)}, {s(SWS,4)}, {s(sT+u)} offen offset:{(ks%4)*1024} sc1", "hb"))
            return out
        npre = min(nk, 8)
        for ks in range(npre): p.add(bload(ks))
        def reads(ks):
            out = []
            for P in range(2): out += self.trpair(AF + (ks & 1)*16 + 8*P, vP0, vP1, groups[ks] + P*1024, 2048)
            return out
        p.add(reads(0))
        acc = lambda u, nt: ACC + (u*4+nt)*4
        for ks in range(nk):
            buf = AF + (ks & 1)*16
            main = [f"v_mfma_f32_16x16x32_bf16 {v(acc(u,nt),4)}, {v(buf+4*nt,4)}, {a_((ks*4+u)*4,4)}, {'0' if ks == 0 else v(acc(u,nt),4)}"
                    for u in (1, 2, 3, 0) for nt in range(4)]
            fill = []
            if ks + 1 < nk:
                if isW2 and ks + 1 >= 9: fill.append(Ctl("wait_vm", tags={f"w2_{ks+1}"}))
                fill += reads(ks+1)
            if isW2:
                if ks + npre < nk: fill += bload(ks + npre)
                if 9 + ks < nk: fill += self.dma_priv(SW2, sG2, 9 + ks, groups[9+ks], f"w2_{9+ks}") if ks < 2 else []
                if 2 <= ks <= 4: fill += self.dma_priv(SW2, sG2, 9 + ks, groups[9+ks], f"w2_{9+ks}")
            p.add(weave(main, fill, per=2, start=1))
        self.stamp(f"{which}{layer}_loop")
        for u in range(1, 4):
            for nt in range(4): p(f"ds_write_b128 {v(vRW)}, {v(acc(u,nt),4)} offset:{ob[u-1] - RBASE + nt*1024}")
        p.wait_lg_all(); p("s_barrier")
        R = AF
        for u in range(1, 4):
            for nt in range(4): p(f"ds_read_b128 {v(R + ((u-1)*4+nt)*4,4)}, {v(vRR+u-1)} offset:{ob[u-1] - RBASE + nt*1024}")
        if isW2 and layer == 0:
            for d in self.dma_wq(range(8)): p.add(d)
        for u in range(1, 4):
            for nt in range(4):
                for h in range(2): p(pk("add", acc(0,nt)+2*h, ("p", acc(0,nt)+2*h), ("p", R + ((u-1)*4+nt)*4 + 2*h)))
        for i in range(8):
            if isW2: p(pk("fma", vXR+2*i, ("p", ACC+2*i), ("b", vRf), ("p", vXR+2*i)))
            else: p(pk("add", vXR+2*i, ("p", ACC+2*i), ("p", vXR+2*i)))
        final = isW2 and layer == 1
        if not final:
            p(f"s_add_u32 {s(sX)}, {s(sX)}, {s(sD0)}\ns_add_u32 {s(sST)}, {s(sST)}, 0x20000")
        p(f"s_add_u32 {s(sH)}, {s(sH)}, {s(sD1)}")
        self.finish_x(1, final=final, halo=(isW2 and layer == 0))
        self.stamp(f"{which}{layer}_epi")
        if final: return
        self.publish(st + 1, halo=(isW2 and layer == 0))
        if not isW2:
            for d in self.dma_w1([6, 7], [3]): p.add(d)
    def w1(self, layer):
        p = self.p
        st = 4*layer + 2
        self.poll(st)
        p("s_barrier")
        self.stamp(f"w1{layer}_go")
        self.load_x()
        p(f"s_lshl_b32 {s(sT)}, {s(sTown)}, 10\ns_add_u32 {s(sT)}, {s(sT)}, {s(sST)}")
        p(f"buffer_load_dwordx4 {v(TMP+4,4)}, {v(vL16)}, {s(SWS,4)}, {s(sT)} offen sc1", tag="stf")
        self.pretouch(False)
        for ks in range(2):
            for d in self.dma_priv(SW2, sG2, ks, W2G[ks], "w2"): p.add(d)
        acc = lambda T, t: ACC + (T*7+t)*4
        def reads(sk):
            b = AF + (sk & 1)*28; out = []
            for P in range(3): out += self.trpair(b + 8*P, vT0, vT1, W1A(sk) + P*1024, 3072)
            for rd in range(2):
                r, o = lds(vTs, W1A(sk) + 6144 + rd*512); out.append(f"ds_read_b64_tr_b16 {v(b+24+2*rd,2)}, {r} offset:{o}")
            return out
        p.add(reads(0))
        stat_fill = self.stats_from(TMP+8, vNM, vRSD) + self.stats_from(TMP+12, vNM+1, vRSD+1)
        for sk in range(16):
            buf = AF + (sk & 1)*28
            main = [f"v_mfma_f32_16x16x32_bf16 {v(acc(Tl,t),4)}, {v(buf+4*t,4)}, {a_((sk*2+Tl)*4,4)}, {'0' if sk == 0 else v(acc(Tl,t),4)}"
                    for t in range(7) for Tl in range(2)]
            fill = reads(sk+1) if sk < 15 else []
            if sk >= 2:
                n = min(len(stat_fill), 6); fill2 = stat_fill[:n]; stat_fill = stat_fill[n:]
                fill = [x for pr in zip(fill, fill2 + [None]*14) for x in pr if x is not None] if fill else fill2
                p.add(weave(main, fill, per=2))
            else: p.add(weave(main, fill, per=1))
        self.stamp(f"w1{layer}_loop")
        p.add(self.stats_from(TMP+4, TMP+2, vRf))
        CS = TMP + 16
        if layer == 0:
            self.csum_pass(f"s_mul_i32 {s(sT)}, {s(sW)}, {4*7168}", 3, 7168, set(), True)
        p.wait_lg_all(); p("s_barrier")
        for ks in range(2, 9):
            for d in self.dma_priv(SW2, sG2, ks, W2G[ks], "w2"): p.add(d)
        self.csum_get(layer == 0, 7, 0, CS, CS1 - TAB)
        HP = lambda T, t: AF + (T*8+t)*2
        for Tl in range(2):
            for t in range(7):
                for h in range(2): p(pk("fma", acc(Tl,t)+2*h, ("p", CS+4*t+2*h), ("b", vNM+Tl), ("p", acc(Tl,t)+2*h)))
                for h in range(2): p(f"v_cvt_pk_bf16_f32 {v(HP(Tl,t)+h)}, {v(acc(Tl,t)+2*h)}, {v(acc(Tl,t)+2*h+1)}")
                for h in range(2): p(f"v_pk_max_i16 {v(HP(Tl,t)+h)}, {v(HP(Tl,t)+h)}, 0")
        p(f"""s_mul_i32 {s(sT)}, {s(sW)}, {2*57344}
        s_add_u32 {s(sT)}, {s(sT)}, {s(sH)}
        s_add_u32 {s(sT+2)}, {s(sT)}, {s(sHs)}
        s_add_u32 {s(sT)}, {s(sT)}, {s(sHp)}
        s_add_u32 {s(sT+1)}, {s(sT)}, 57344
        s_add_u32 {s(sT+3)}, {s(sT+2)}, 57344""")
        L = []
        for Tl in range(2):
            for P in range(3): L.append(f"buffer_store_dwordx4 {v(HP(Tl,2*P),4)}, {v(vL16)}, {s(SWS,4)}, {s(sT+Tl)} offen offset:{P*1024}")
            L.append(f"buffer_store_dwordx2 {v(HP(Tl,6),2)}, {v(vL16)}, {s(SWS,4)}, {s(sT+2+Tl)} offen")
        self.store_m(L)
        self.stamp(f"w1{layer}_epi")
        self.publish(st + 1)
    def build(self):
        p = self.p
        self.setup(); self.stamp("setup")
        if self.stamps:
            p(f"s_memrealtime {s(sTS,2)}\ns_waitcnt lgkmcnt(0)\nv_writelane_b32 {v(vTSV)}, {s(sTS)}, 62")
        self.stage0(); self.stamp("s0")
        for layer in range(2):
            self.qkv(layer); self.ksplit(layer, "wo"); self.w1(layer); self.ksplit(layer, "w2")
        if self.stamps:
            p.wait_vm_all(); self.stamp("end")
            p(f"s_memrealtime {s(sTS,2)}\ns_waitcnt lgkmcnt(0)\nv_writelane_b32 {v(vTSV)}, {s(sTS)}, 63")
            p(f"v_writelane_b32 {v(vTSV)}, {s(sMODE)}, 61")
            p(f"""s_lshl_b32 {s(sT)}, s2, 10
            s_lshl_b32 {s(sT+1)}, {s(sW)}, 8
            s_add_u32 {s(sT)}, {s(sT)}, {s(sT+1)}
            s_add_u32 {s(sT)}, {s(sT)}, {TSB}
            v_lshrrev_b32 {v(TMP)}, 2, {v(vL16)}
            buffer_store_dword {v(vTSV)}, {v(TMP)}, {s(SWS,4)}, {s(sT)} offen""")
        p("L_END:\ns_endpgm")
        body, stats = finalize(p)
        txt = (f"; STAMPS {self.names}\n" if self.stamps else "") + header([(None, (256,1,1), (256,1,1), 163840)]) + kernel_begin(NAME) + body + rodata_begin() + kernel_desc(NAME, 512, 102, 256)
        return txt, stats

if __name__ == "__main__":
    import argparse
    ap = argparse.ArgumentParser()
    ap.add_argument("out"); ap.add_argument("--distinct", action="store_true"); ap.add_argument("--stamps", action="store_true")
    ap.add_argument("--fallback", action="store_true")
    a = ap.parse_args()
    txt, stats = K(a.distinct, a.stamps, a.fallback).build()
    open(a.out, "w").write(txt); print(stats, len(txt))
```

```python
import re, copy

def v(n, c=1): return f"v{n}" if c == 1 else f"v[{n}:{n+c-1}]"
def a_(n, c=1): return f"a{n}" if c == 1 else f"a[{n}:{n+c-1}]"
def s(n, c=1): return f"s{n}" if c == 1 else f"s[{n}:{n+c-1}]"

_REG = re.compile(r"^-?(?:abs\()?\|?([vas])(?:(\d+)|\[(\d+):(\d+)\])\)?\|?$")
def regs_of(op):
    op = op.strip()
    if op in ("vcc", "exec"): return [op]
    if op in ("vcc_lo", "vcc_hi"): return ["vcc"]
    if op in ("exec_lo", "exec_hi"): return ["exec"]
    if op == "m0": return ["m0"]
    if op == "scc": return ["scc"]
    m = _REG.match(op)
    if not m: return []
    k = m.group(1)
    if m.group(2) is not None: return [f"{k}{m.group(2)}"]
    return [f"{k}{i}" for i in range(int(m.group(3)), int(m.group(4)) + 1)]

TRANS = ("v_exp_f32", "v_log_f32", "v_rcp_f32", "v_rsq_f32", "v_sqrt_f32", "v_sin_f32", "v_cos_f32")

class Ins:
    __slots__ = ("text", "kind", "rd", "wr", "tag", "mn", "passes", "srcC", "wide", "dpp", "cmt")
    def __init__(self, text, tag=None):
        self.text = text; self.tag = tag
        t = text.split(";")[0].strip()
        parts = t.split(None, 1)
        mn = parts[0]; self.mn = mn
        rest = parts[1] if len(parts) > 1 else ""
        ops = []; cur = ""; depth = 0
        for ch in rest:
            if ch in "[(": depth += 1
            if ch in "])": depth -= 1
            if ch == "," and depth == 0: ops.append(cur.strip()); cur = ""
            else: cur += ch
        if cur.strip(): ops.append(cur.strip())
        mods = ""
        if ops:
            sp = ops[-1].split(None, 1)
            ops[-1] = sp[0]
            mods = sp[1] if len(sp) > 1 else ""
        R = [regs_of(o) for o in ops]
        rd = set(); wr = set(); self.passes = 0; self.srcC = None; self.wide = False
        self.dpp = ("row_" in mods or "quad_perm" in mods or "_dpp" in mn)
        flat = lambda L: [x for l in L for x in l]
        if mn.startswith("v_mfma"):
            self.kind = "mfma"; wr |= set(R[0]); rd |= set(flat(R[1:]))
            self.passes = 8 if "32x32" in mn else 4
            self.srcC = tuple(R[3])
        elif mn.startswith("v_permlane") and "swap" in mn:
            self.kind = "permlane"; wr |= set(R[0] + R[1]); rd |= set(R[0] + R[1])
        elif mn.startswith("v_readfirstlane") or mn.startswith("v_readlane"):
            self.kind = "readlane"; wr |= set(R[0]); rd |= set(flat(R[1:]))
        elif mn.startswith("v_writelane"):
            self.kind = "valu"; wr |= set(R[0]); rd |= set(flat(R))
        elif mn.startswith("v_cmp"):
            self.kind = "valu"; wr |= set(R[0]); rd |= set(flat(R[1:]))
        elif mn.startswith("v_"):
            self.kind = "trans" if mn.replace("_e32", "").replace("_e64", "") in TRANS else "valu"
            wr |= set(R[0]); rd |= set(flat(R[1:]))
            if mn.startswith(("v_fmac", "v_pk_fmac", "v_dot2c", "v_mac")) or self.dpp: rd |= set(R[0])
            if mn.startswith(("v_add_co", "v_sub_co", "v_addc_co", "v_subb_co")):
                wr |= set(R[1])
            if mn.startswith("v_swap"): wr |= set(R[1]); rd |= set(R[0])
        elif mn.startswith("buffer_load") or mn.startswith("global_load"):
            if re.search(r"\blds\b", mods):
                self.kind = "dma"; rd |= set(flat(R)); rd.add("m0")
            else:
                self.kind = "vmem_ld"; wr |= set(R[0]); rd |= set(flat(R[1:]))
        elif mn.startswith("buffer_store") or mn.startswith("global_store"):
            self.kind = "vmem_st"; rd |= set(flat(R)); self.wide = mn.endswith(("x3", "x4"))
            self.srcC = tuple(R[0]) if mn.startswith("buffer") else tuple(R[1])
        elif mn.startswith("ds_read") or mn.startswith("ds_bpermute") or mn.startswith("ds_swizzle"):
            self.kind = "ds_rd"; wr |= set(R[0]); rd |= set(flat(R[1:]))
        elif mn.startswith("ds_write") or mn.startswith("ds_add"):
            self.kind = "ds_wr"; rd |= set(flat(R))
        elif mn.startswith(("s_load", "s_memtime", "s_memrealtime", "s_buffer_load")):
            self.kind = "smem"; wr |= set(R[0]); rd |= set(flat(R[1:]))
        elif mn == "s_waitcnt": self.kind = "wait"
        elif mn == "s_nop": self.kind = "nop"
        elif mn == "s_barrier": self.kind = "barrier"
        elif mn.startswith(("s_cbranch", "s_branch")):
            self.kind = "branch"
            if "vcc" in mn: rd.add("vcc")
        elif mn in ("s_endpgm", "s_setprio", "s_sleep"): self.kind = "misc"
        elif mn.startswith("s_cmp") or mn.startswith("s_bitcmp"):
            self.kind = "salu"; rd |= set(flat(R)); wr.add("scc")
        elif mn.startswith("s_"):
            self.kind = "salu"; wr |= set(R[0]); rd |= set(flat(R[1:]))
            if "saveexec" in mn: wr.add("exec"); rd.add("exec")
        elif mn.endswith(":"): self.kind = "label"
        else: raise ValueError("unknown instruction: " + text)
        self.rd = rd; self.wr = wr

class Ctl:
    def __init__(self, kind, **kw): self.kind = kind; self.__dict__.update(kw)

class State:
    def __init__(self):
        self.clock = 0
        self.vm = []
        self.lg = []
        self.valu_wr = {}; self.trans_wr = {}; self.mfma_wr = {}; self.mfma_rdC = {}; self.wide_rd = {}
        self.m0_wr = -100
    def clone(self): return copy.deepcopy(self)

class Prog:
    def __init__(self):
        self.items = []; self._lab = 0
    def __call__(self, text, tag=None):
        for l in text.strip("\n").split("\n"):
            l = l.strip()
            if not l or l.startswith(";"): continue
            self.items.append(Ins(l, tag))
        return self
    def add(self, it):
        if isinstance(it, (list, tuple)):
            for x in it: self.add(x)
        elif isinstance(it, str): self(it)
        else: self.items.append(it)
    def newlabel(self, base="L"):
        self._lab += 1; return f"{base}_{self._lab}"
    def comment(self, c): self.items.append(Ctl("comment", text=c))
    def wait_vm(self, *tags): self.items.append(Ctl("wait_vm", tags=set(tags)))
    def wait_vm_all(self): self.items.append(Ctl("wait_vm_all"))
    def wait_lg_all(self): self.items.append(Ctl("wait_lg_all"))
    def wait_lg(self, *tags): self.items.append(Ctl("wait_lg", tags=set(tags)))
    def wait2(self, vt=(), lt=()): self.items.append(W2(vt, lt))
    def ifelse(self, branch_if_else, A, B):
        self.items.append(Ctl("ifelse", br=branch_if_else, A=A, B=B, l1=self.newlabel("ELSE"), l2=self.newlabel("ENDIF")))
    def raw(self, text, clears_vm=False, clears_lg=False):
        self.items.append(Ctl("raw", text=text, clears_vm=clears_vm, clears_lg=clears_lg))

def W2(vt=(), lt=()): return Ctl("wait2", vt=set(vt), lt=set(lt))

def sub(parent):
    p = Prog(); p._lab = parent._lab + 1000; parent._lab += 2000; return p

MF_RAW = {2: 5, 4: 8, 8: 12, 16: 20}
MF_OVL = {2: 4, 4: 6, 8: 10, 16: 18}
MF_WARC = {2: 1, 4: 3, 8: 7, 16: 15}

class Finalizer:
    def __init__(self):
        self.out = []; self.stats = dict(nops=0, waits=0, n=0)
    def emit(self, st, text, n=1):
        self.out.append("    " + text); st.clock += n
    def need_wait(self, st, vmN, lgN):
        if vmN is None and lgN is None: return
        parts = []
        if vmN is not None:
            vmN = min(vmN, 62); parts.append(f"vmcnt({vmN})"); st.vm = st.vm[len(st.vm) - vmN:] if vmN > 0 else []
        if lgN is not None:
            lgN = min(lgN, 14); parts.append(f"lgkmcnt({lgN})"); st.lg = st.lg[len(st.lg) - lgN:] if lgN > 0 else []
        self.emit(st, "s_waitcnt " + " ".join(parts)); self.stats["waits"] += 1
    def run(self, prog, st):
        for it in prog.items:
            if isinstance(it, Ctl): self.ctl(it, st)
            else: self.ins(it, st)
        return st
    def ctl(self, c, st):
        k = c.kind
        if k == "comment": self.out.append("    ; " + c.text)
        elif k == "wait_vm":
            idx = [i for i, (t, _) in enumerate(st.vm) if t in c.tags]
            if idx: self.need_wait(st, len(st.vm) - 1 - idx[-1], None)
        elif k == "wait_vm_all":
            if st.vm: self.need_wait(st, 0, None)
        elif k == "wait_lg_all":
            if st.lg: self.need_wait(st, None, 0)
        elif k == "wait_lg":
            idx = [i for i, (kk, t, _) in enumerate(st.lg) if t in c.tags]
            if idx:
                n = len(st.lg) - 1 - idx[-1]
                if any(kk == "smem" for kk, _, _ in st.lg): n = 0
                self.need_wait(st, None, n)
        elif k == "wait2":
            vi = [i for i, (t, _) in enumerate(st.vm) if t in c.vt]
            li = [i for i, (kk, t, _) in enumerate(st.lg) if t in c.lt]
            vn = len(st.vm) - 1 - vi[-1] if vi else None
            ln = len(st.lg) - 1 - li[-1] if li else None
            if ln is not None and any(kk == "smem" for kk, _, _ in st.lg): ln = 0
            self.need_wait(st, vn, ln)
        elif k == "raw":
            lines = [l.strip() for l in c.text.strip("\n").split("\n") if l.strip()]
            rd = set(); wr = set()
            for l in lines:
                if l.endswith(":") or l.startswith(";"): continue
                i = Ins(l); rd |= i.rd; wr |= i.wr
            fake = Ins("s_sleep 0"); fake.rd = rd; fake.wr = wr; fake.kind = "rawuse"
            self.memdeps(fake, st)
            need = 0
            for r in rd | wr:
                if r in st.mfma_wr: need = max(need, MF_RAW[st.mfma_wr[r][1]] - (st.clock - st.mfma_wr[r][0] - 1))
                if r in st.valu_wr: need = max(need, 5 - (st.clock - st.valu_wr[r] - 1))
                if r in st.wide_rd: need = max(need, 2 - (st.clock - st.wide_rd[r] - 1))
            self.pad(st, need)
            for l in lines:
                self.out.append(l if l.endswith(":") else "    " + l)
            st.clock += 1
            for r in wr:
                if r[0] in "vas" or r == "vcc": st.valu_wr[r] = st.clock - 1
            if "m0" in wr: st.m0_wr = st.clock - 1
            if c.clears_vm: st.vm = []
            if c.clears_lg: st.lg = []
        elif k == "ifelse":
            self.ins(Ins(f"{c.br} {c.l1}"), st)
            sa = self.run(c.A, st.clone())
            if c.B.items:
                self.out.append(f"    s_branch {c.l2}"); sa.clock += 1
            self.out.append(f"{c.l1}:")
            sb = self.run(c.B, st.clone())
            if c.B.items: self.out.append(f"{c.l2}:")
            ta = [t for t, _ in sa.vm]; tb = [t for t, _ in sb.vm]
            n = min(len(ta), len(tb))
            assert ta[len(ta)-n:] == tb[len(tb)-n:], f"ifelse vm mismatch {ta} {tb}"
            lng, sh = (sa.vm, sb.vm) if len(ta) >= len(tb) else (sb.vm, sa.vm)
            na = sa_new = getattr(sa, "_vm_issued", 0) ; nb = getattr(sb, "_vm_issued", 0)
            assert na == nb, f"ifelse: arms issue different vm op counts {na} {nb}"
            vm = [(t, set(d)) for t, d in lng]
            for i in range(1, n + 1): vm[-i][1].update(sh[-i][1])
            la = getattr(sa, "_lg_issued", 0); lb = getattr(sb, "_lg_issued", 0)
            if la != lb:
                assert not sa.lg and not sb.lg or True
                lg = [("smem", None, set().union(*[d for _, _, d in sa.lg + sb.lg]))] if (sa.lg or sb.lg) else []
            else:
                lngl, shl = (sa.lg, sb.lg) if len(sa.lg) >= len(sb.lg) else (sb.lg, sa.lg)
                lg = [(k2, t, set(d)) for k2, t, d in lngl]
                for i in range(1, len(shl) + 1): lg[-i][2].update(shl[-i][2])
            new = st; clk = max(sa.clock, sb.clock); new.clock = clk
            new.vm = vm; new.lg = lg
            new._vm_issued = na; new._lg_issued = max(la, lb)
            def mg(da, db, key=lambda x: x, mk=lambda x, t: t):
                o = {}
                for r in set(da) | set(db):
                    c1 = key(da[r]) + (clk - sa.clock) if r in da else -10**9
                    c2 = key(db[r]) + (clk - sb.clock) if r in db else -10**9
                    o[r] = mk(da[r], c1) if c1 >= c2 else mk(db[r], c2)
                return o
            new.valu_wr = mg(sa.valu_wr, sb.valu_wr); new.trans_wr = mg(sa.trans_wr, sb.trans_wr)
            new.wide_rd = mg(sa.wide_rd, sb.wide_rd)
            new.mfma_wr = mg(sa.mfma_wr, sb.mfma_wr, key=lambda x: x[0], mk=lambda x, t: (t, x[1], None))
            new.mfma_rdC = mg(sa.mfma_rdC, sb.mfma_rdC, key=lambda x: x[0], mk=lambda x, t: (t, x[1]))
            new.m0_wr = max(sa.m0_wr + clk - sa.clock, sb.m0_wr + clk - sb.clock)
        else: raise ValueError(k)
    def pad(self, st, need):
        while need > 0:
            n = min(need, 16); self.emit(st, f"s_nop {n-1}", n); need -= n; self.stats["nops"] += 1
    def memdeps(self, i, st):
        touch = i.rd | i.wr
        vmN = None; lgN = None
        for idx, (t, d) in enumerate(st.vm):
            if d & touch: vmN = len(st.vm) - 1 - idx
        for idx, (k, t, d) in enumerate(st.lg):
            if d & touch: lgN = len(st.lg) - 1 - idx
        if lgN is not None and any(k == "smem" for k, _, _ in st.lg): lgN = 0
        self.need_wait(st, vmN, lgN)
    def ins(self, i, st):
        k = i.kind
        if k == "label": self.out.append(i.text); return
        if k == "nop":
            n = int(i.text.split()[1]) + 1; self.emit(st, i.text, n); return
        if k == "wait":
            m = re.search(r"vmcnt\((\d+)\)", i.text)
            if m: n = int(m.group(1)); st.vm = st.vm[len(st.vm) - n:] if 0 < n < len(st.vm) else ([] if n == 0 else st.vm)
            m = re.search(r"lgkmcnt\((\d+)\)", i.text)
            if m:
                n = int(m.group(1))
                if n == 0: st.lg = []
                elif not any(kk == "smem" for kk, _, _ in st.lg) and n < len(st.lg): st.lg = st.lg[len(st.lg) - n:]
            self.emit(st, i.text); return
        self.memdeps(i, st)
        if k in ("vmem_ld", "vmem_st", "dma") and len(st.vm) >= 63: self.need_wait(st, 62, None)
        if k in ("ds_rd", "ds_wr") and len(st.lg) >= 15: self.need_wait(st, None, 0 if any(kk == "smem" for kk, _, _ in st.lg) else 14)
        need = 0
        def req(prod_clock, n):
            nonlocal need
            need = max(need, n - (st.clock - prod_clock - 1))
        isvalu = k in ("valu", "trans", "permlane", "readlane")
        ismem = k in ("vmem_ld", "vmem_st", "dma", "ds_rd", "ds_wr")
        for r in i.rd:
            if r in st.valu_wr:
                pc = st.valu_wr[r]
                if r[0] in "va" and r != "vcc":
                    if k == "mfma": req(pc, 2)
                    if k == "permlane" or i.dpp: req(pc, 2)
                    if k == "readlane": req(pc, 1)
                else:
                    if isvalu or k == "mfma": req(pc, 4 if k == "readlane" else 2)
                    if k in ("vmem_ld", "vmem_st", "dma"): req(pc, 5)
                    if k in ("salu", "branch"): req(pc, 1 if r != "vcc" else 5 if k == "branch" else 1)
            if r in st.trans_wr and (isvalu or k == "mfma"): req(st.trans_wr[r], 2 if k == "mfma" else 1)
            if r in st.mfma_wr:
                pc, ps, dst = st.mfma_wr[r]
                if k == "mfma":
                    if i.srcC and r in i.srcC and not (r in set(x for x in i.rd) - set(i.srcC)):
                        if dst == i.srcC and ps == i.passes: pass
                        else: req(pc, MF_OVL[ps])
                    else: req(pc, MF_RAW[ps])
                elif isvalu or ismem: req(pc, MF_RAW[ps])
        for r in i.wr:
            if r in st.mfma_wr and (isvalu or k in ("vmem_ld", "ds_rd")): req(st.mfma_wr[r][0], MF_RAW[st.mfma_wr[r][1]])
            if r in st.mfma_wr and k == "mfma":
                pc, ps, dst = st.mfma_wr[r]
                if not (dst == tuple(sorted(i.wr, key=lambda x: int(x[1:]))) and ps == i.passes): req(pc, MF_OVL[ps])
            if r in st.mfma_rdC and isvalu: req(st.mfma_rdC[r][0], MF_WARC[st.mfma_rdC[r][1]])
            if r in st.wide_rd and (isvalu or k in ("mfma", "vmem_ld", "ds_rd")): req(st.wide_rd[r], 2)
        if k == "dma": req(st.m0_wr, 1)
        self.pad(st, need)
        c = st.clock
        self.emit(st, i.text); self.stats["n"] += 1
        for r in i.wr:
            st.valu_wr.pop(r, None); st.trans_wr.pop(r, None)
            if k != "mfma": st.mfma_wr.pop(r, None)
        if isvalu:
            for r in i.wr: st.valu_wr[r] = c
            if k == "trans":
                for r in i.wr: st.trans_wr[r] = c
        elif k == "mfma":
            dst = tuple(sorted(i.wr, key=lambda x: int(x[1:])))
            for r in i.wr: st.mfma_wr[r] = (c, i.passes, dst)
            for r in (i.srcC or ()): st.mfma_rdC[r] = (c, i.passes)
        elif k == "salu":
            if "m0" in i.wr: st.m0_wr = c
        if k in ("vmem_ld", "vmem_st", "dma"):
            st.vm.append((i.tag, set(i.wr))); st._vm_issued = getattr(st, "_vm_issued", 0) + 1
            if i.wide:
                for r in i.srcC: st.wide_rd[r] = c
        if k in ("ds_rd", "ds_wr"):
            st.lg.append(("ds", i.tag, set(i.wr))); st._lg_issued = getattr(st, "_lg_issued", 0) + 1
        if k == "smem":
            st.lg.append(("smem", i.tag, set(i.wr))); st._lg_issued = getattr(st, "_lg_issued", 0) + 1

def finalize(prog):
    f = Finalizer(); f.run(prog, State())
    return "\n".join(f.out) + "\n", f.stats

def weave(main, fill, per=2, start=0):
    out = []; fill = list(fill); n = 0
    for it in main:
        out.append(it)
        if isinstance(it, str) and it.startswith("v_mfma"):
            n += 1
            if n > start:
                for _ in range(per):
                    if fill: out.append(fill.pop(0))
    out.extend(fill)
    return out

def est(it):
    if isinstance(it, (list, tuple)): return sum(est(x) for x in it)
    if isinstance(it, Ctl): return 4 if it.kind.startswith("wait") else 0
    t = it if isinstance(it, str) else it.text
    if t.startswith("v_mfma"): return 8
    if t.startswith(TRANS): return 8
    if t.startswith("ds_write_b128"): return 14
    return 4

def pace(main, bg, period, t0=0):
    out = []; t = t0
    for it in main:
        if bg and t >= period:
            b = bg.pop(0); out.append(b); t = est(b) if period > est(b) else 0
        out.append(it); t += est(it)
    return out

def gaps(mf, *placements):
    n = len(mf); G = [[] for _ in range(n)]; PRE = [[] for _ in range(n)]
    for pl in placements:
        if pl[0] == "pre": PRE[pl[2]].extend(pl[1]); continue
        items, first, stride = pl
        for k, it in enumerate(items): G[min(first + k*stride, n-1)].append(it)
    out = []
    for i in range(n): out += PRE[i] + [mf[i]] + G[i]
    return out
```

```python
import sys
from gen_core import *
from asmlib import header, kernel_begin, kernel_desc, rodata_begin
NAME = "interleave_layers__sliding_local_dilated__dense_activation_relu__prompt_kernel"
KB = 1024
FLG, HFL, HALO, STATS, P0, P1, TSB = 0, 4096, 0x10000, 0x80000, 0x200000, 0x1000000, 0x3000000
WS_SIZE = 0x4000000
C0, C1 = 0x5bd1e995, 0x2545f491
TAB = 156*KB
CSQ, HS, CS1, CSP, RS = TAB, TAB+384, TAB+512, TAB+1024, TAB+3072
def WQ(s): return 48*KB + 6144*s if s < 8 else 6144*(s-8)
HIMG = 96*KB
KVX = 70*KB
WOG = [124*KB, 140*KB, 92*KB, 108*KB]
def W1A(s): return 7168*s
W2G = [112*KB, 128*KB, 0, 16*KB, 32*KB, 48*KB, 64*KB, 80*KB, 96*KB, 112*KB, 128*KB, 0, 16*KB, 32*KB]
RBASE = 92*KB
OB_WO = [124*KB, 140*KB, 92*KB]
OB_W2 = [96*KB, 112*KB, 128*KB]
SX, SWQ, SWO, SW1, SW2, SOUT, SWS = 4, 8, 12, 16, 20, 24, 28
sG, sC16, sC8, sRQ, sW, sXCC, sMODE = 32, 33, 34, 35, 36, 37, 38
sF0, sF1, sFoff = 39, 40, 41
sPUB = 42
sX, sH, sST = 44, 45, 46
sD0, sD1 = 47, 48
sGQ, sLQ, sG1, sL1, sG1s, sL1s, sG2, sGO, sL2 = 49, 50, 51, 52, 53, 54, 55, 56, 57
sHsrc, sHl = 58, 59
sHp, sHs = 60, 61
sTown = 62
sHF0, sHF1, sHFoff = 63, 64, 65
sHPUB = 66
sT = 68
sCNT = 80
sM = 82
sHM = 84
sTS = 86
sEPS, sINV = 88, 89
sXA = 90
vL16 = 1
vT0, vT1, vTs = 2, 4, 6
vP0, vP1 = 8, 11
vDq, vD1s = 14, 15
vD1 = 16
vD2 = 80
vSA = 84
vTch = 19
vL128 = 86
vE0, vE1, vFo, vHE0, vHE1, vHo = 20, 21, 22, 23, 24, 25
vRW, vRR = 26, 27
vKp, vVp, vKW, vKH = 30, 32, 34, 35
vBC, vBP = 36, 40
vXR = 44
vSt, vHalo, vRSw, vRSr, vCSr, vCSl, vOut, vHst = 60, 61, 62, 63, 64, 65, 66, 67
vONE = 68
vRf, vHA, vTSV, vHSa = 72, 73, 74, 75
vNM, vRSD = 76, 78
ACC, AF, TMP = 88, 152, 208

def lds(base3, addr):
    return v(base3 + (addr >> 16)), addr & 0xffff

def pk(op, dst, *srcs):
    txt = []; sel = []; selh = []; neg = []
    for k, r in srcs:
        n = k.startswith("n"); k = k[-1]
        if k == "p": assert r % 2 == 0; txt.append(v(r, 2)); sel.append(0); selh.append(1)
        else: txt.append(v(r & ~1, 2)); sel.append(r & 1); selh.append(r & 1)
        neg.append(int(n))
    assert dst % 2 == 0
    m = ""
    if any(sel): m += f" op_sel:[{','.join(map(str, sel))}]"
    if not all(selh): m += f" op_sel_hi:[{','.join(map(str, selh))}]"
    if any(neg): m += f" neg_lo:[{','.join(map(str, neg))}] neg_hi:[{','.join(map(str, neg))}]"
    return f"v_pk_{op}_f32 {v(dst, 2)}, {', '.join(txt)}{m}"

class K:
    def __init__(self, distinct=False, stamps=False, force_fallback=False, opts=None):
        self.p = Prog(); self.distinct = distinct; self.stamps = stamps; self.nst = 0; self.names = []
        self.force_fallback = force_fallback
        self.o = dict(w1_attn=2, p_attn=80, w1_mid=8, w2_pre=[9, 9])
        self.o.update(opts or {})
    def stamp(self, name):
        if not self.stamps: return
        p = self.p
        p.wait_lg_all()
        p(f"s_memtime {s(sTS,2)}\ns_waitcnt lgkmcnt(0)\nv_writelane_b32 {v(vTSV)}, {s(sTS)}, {self.nst}")
        self.names.append(name); self.nst += 1
    def setup(self):
        p = self.p
        p(f"s_cmp_ge_u32 s2, 256\ns_cbranch_scc1 L_END")
        for r, off in ((SX, 0), (SWQ, 8), (SWO, 16), (SW1, 32), (SW2, 40), (SOUT, 48), (SWS, 64)):
            p(f"s_load_dwordx2 {s(r,2)}, s[0:1], {off}")
        p(f"""
        s_getreg_b32 {s(sXCC)}, hwreg(HW_REG_XCC_ID, 0, 3)
        v_lshrrev_b32 v2, 6, v0
        v_and_b32 v0, 63, v0
        v_readfirstlane_b32 {s(sW)}, v2
        s_and_b32 {s(sT)}, s2, 7
        s_lshr_b32 {s(sT+1)}, s2, 3
        s_lshr_b32 {s(sT+2)}, {s(sT+1)}, 4
        s_lshl_b32 {s(sG)}, {s(sT)}, 1
        s_add_u32 {s(sG)}, {s(sG)}, {s(sT+2)}
        s_and_b32 {s(sC16)}, {s(sT+1)}, 15
        s_and_b32 {s(sC8)}, {s(sT+1)}, 7
        s_lshr_b32 {s(sRQ)}, {s(sC16)}, 3
        s_lshl_b32 {s(sTown)}, {s(sRQ)}, 2
        s_add_u32 {s(sTown)}, {s(sTown)}, {s(sW)}
        v_lshlrev_b32 {v(vL16)}, 4, v0
        v_mov_b32 {v(vTSV)}, 0
        v_lshlrev_b32 {v(vL128)}, 7, v0
        s_waitcnt lgkmcnt(0)""")
        for r, sz in ((SX, 2048*1024), (SWQ, 512*3072), (SWO, 512*1024), (SW1, 512*3584), (SW2, 1792*1024), (SOUT, 2048*1024), (SWS, WS_SIZE)):
            if r in (SWO, SW1, SW2):
                p(f"s_sub_u32 {s(r)}, {s(r)}, 4096\ns_subb_u32 {s(r+1)}, {s(r+1)}, 0"); sz += 4096
            p(f"s_and_b32 {s(r+1)}, {s(r+1)}, 0xffff\ns_mov_b32 {s(r+2)}, {sz}\ns_mov_b32 {s(r+3)}, 0x20000")
        t = TMP
        p(f"""
        v_and_b32 {v(t)}, 15, v0
        v_lshrrev_b32 {v(t+1)}, 4, v0
        v_lshrrev_b32 {v(t+2)}, 2, v0
        v_and_b32 {v(t+3)}, 3, v0""")
        p(f"""
        s_lshr_b32 {s(sT)}, {s(sTown)}, 1
        s_lshl_b32 {s(sT)}, {s(sT)}, 5
        s_and_b32 {s(sT+1)}, {s(sTown)}, 1
        s_add_u32 {s(sT)}, {s(sT)}, {s(sT+1)}
        s_lshl_b32 {s(sT+1)}, {s(sG)}, 7
        s_add_u32 {s(sT)}, {s(sT)}, {s(sT+1)}
        s_lshl_b32 {s(sT)}, {s(sT)}, 10
        s_lshl_b32 {s(sT+1)}, {s(sC8)}, 7
        s_add_u32 {s(sT)}, {s(sT)}, {s(sT+1)}
        v_and_b32 {v(t+4)}, 1, {v(t+1)}
        v_lshlrev_b32 {v(t+5)}, 5, {v(t+4)}
        v_lshrrev_b32 {v(t+6)}, 1, {v(t+1)}
        v_lshl_add_u32 {v(t+5)}, {v(t+6)}, 4, {v(t+5)}
        v_lshl_add_u32 {v(t+6)}, {v(t)}, 11, {v(t+5)}
        v_add_u32 {v(vOut)}, {s(sT)}, {v(t+6)}""")
        p(f"buffer_load_dwordx4 {v(ACC,4)}, {v(vOut)}, {s(SX,4)}, 0 offen", tag="x0")
        p(f"buffer_load_dwordx4 {v(ACC+4,4)}, {v(vOut)}, {s(SX,4)}, 0 offen offset:64", tag="x0")
        p(f"""
        v_and_b32 {v(t+7)}, 31, v0
        v_lshlrev_b32 {v(t+7)}, 3, {v(t+7)}
        s_lshl_b32 {s(sT)}, {s(sG)}, 8
        v_lshlrev_b32 {v(t+8)}, 3, {v(t)}
        v_add_u32 {v(vFo)}, {s(sT)}, {v(t+8)}
        s_add_u32 {s(sT+1)}, {s(sT)}, {HFL}
        s_add_u32 {s(sT+2)}, {s(sG)}, 15
        s_and_b32 {s(sT+2)}, {s(sT+2)}, 15
        s_lshl_b32 {s(sT+2)}, {s(sT+2)}, 8
        s_add_u32 {s(sT+2)}, {s(sT+2)}, {HFL}
        v_and_b32 {v(t+9)}, 7, v0
        v_lshlrev_b32 {v(t+9)}, 3, {v(t+9)}
        v_add_u32 {v(vHo)}, {s(sT+2)}, {v(t+9)}""")
        p(f"buffer_load_dwordx2 {v(vE0,2)}, {v(vFo)}, {s(SWS,4)}, 0 offen sc1", tag="ep")
        p(f"buffer_load_dwordx2 {v(t+10,2)}, {v(t+7)}, {s(SWS,4)}, {s(sT)} offen sc1", tag="ep")
        p(f"buffer_load_dwordx2 {v(t+12,2)}, {v(vHo)}, {s(SWS,4)}, 0 offen sc1", tag="ep")
        p(f"buffer_load_dwordx2 {v(t+14,2)}, {v(t+9)}, {s(SWS,4)}, {s(sT+1)} offen sc1", tag="ep")
        j4 = [f"s_lshr_b32 {s(sT+9)}, s2, 3", f"s_lshl_b32 {s(sT+9)}, {s(sT+9)}, 2", f"s_add_u32 {s(sT+9)}, {s(sT+9)}, {s(sW)}"]
        p.add(self.touch(SWQ, j4 + [f"s_lshl_b32 {s(sT+9)}, {s(sT+9)}, 13"], 64))
        p.add(self.touch(SWQ, j4 + [f"s_lshl_b32 {s(sT+9)}, {s(sT+9)}, 12", f"s_add_u32 {s(sT+9)}, {s(sT+9)}, 0x100000"], 32))
        p.add(j4 + [f"s_lshl_b32 {s(sT+9)}, {s(sT+9)}, 9", f"s_min_u32 {s(sT+9)}, {s(sT+9)}, L_END-L_PC-384", f"s_getpc_b64 {s(sT+10,2)}", "L_PC:", f"s_add_u32 {s(sT+10)}, {s(sT+10)}, {s(sT+9)}", f"s_addc_u32 {s(sT+11)}, {s(sT+11)}, 0",
                    "s_mov_b64 exec, 0xf", Ins(f"global_load_dword {v(vTch)}, {v(vL128)}, {s(sT+10,2)}", "pt"), "s_mov_b64 exec, -1"])
        p(f"""
        s_lshl_b32 {s(sT+3)}, {s(sC16)}, 3
        s_add_u32 {s(sFoff)}, {s(sT)}, {s(sT+3)}
        s_add_u32 {s(sFoff)}, {s(sFoff)}, 128
        s_lshl_b32 {s(sT+3)}, {s(sC8)}, 3
        s_add_u32 {s(sHFoff)}, {s(sT+1)}, {s(sT+3)}
        s_add_u32 {s(sHFoff)}, {s(sHFoff)}, 128
        v_add_u32 {v(vFo)}, 128, {v(vFo)}""")
        p(f"""
        v_lshlrev_b32 {v(t+16)}, 6, {v(t+2)}
        v_lshl_add_u32 {v(t+16)}, {v(t+3)}, 3, {v(t+16)}
        v_lshl_add_u32 {v(vT0)}, {v(t+4)}, 5, {v(t+16)}
        v_xor_b32 {v(vT1)}, 32, {v(vT0)}
        v_add_u32 {v(vT0+1)}, 0x10000, {v(vT0)}
        v_add_u32 {v(vT1+1)}, 0x10000, {v(vT1)}
        v_lshlrev_b32 {v(vTs)}, 3, v0
        v_add_u32 {v(vTs+1)}, 0x10000, {v(vTs)}
        s_lshl_b32 {s(sL2)}, {s(sW)}, 12""")
        for i in range(2):
            p(f"v_add_u32 {v(vP0+i)}, {s(sL2)}, {v(vT0+i)}\nv_add_u32 {v(vP1+i)}, {s(sL2)}, {v(vT1+i)}")
        p(f"v_add_u32 {v(vP0+2)}, 0x10000, {v(vP0+1)}\nv_add_u32 {v(vP1+2)}, 0x10000, {v(vP1+1)}")
        p(f"s_lshl_b32 {s(sT)}, {s(sW)}, 10\nv_add_u32 {v(vSA)}, {s(sT)}, {v(vL16)}\nv_add_u32 {v(vSA+1)}, 0x10000, {v(vSA)}")
        p(f"""
        v_lshrrev_b32 {v(t+16)}, 1, {v(t+3)}
        v_xor_b32 {v(t+16)}, {v(t+16)}, {v(t+4)}
        v_lshlrev_b32 {v(t+16)}, 5, {v(t+16)}
        v_and_b32 {v(t+17)}, 1, v0
        v_lshl_add_u32 {v(t+16)}, {v(t+17)}, 4, {v(t+16)}
        v_mul_u32_u24 {v(vDq)}, 3072, {v(t+2)}
        v_add_u32 {v(vDq)}, {v(vDq)}, {v(t+16)}
        v_mul_u32_u24 {v(vD1)}, 3584, {v(t+2)}
        v_add_u32 {v(vD1)}, {v(vD1)}, {v(t+16)}
        v_lshl_add_u32 {v(vD2)}, {v(t+2)}, 10, {v(t+16)}
        v_lshrrev_b32 {v(t+18)}, 1, v0
        v_mul_u32_u24 {v(vD1s)}, 3584, {v(t+18)}
        v_lshl_add_u32 {v(vD1s)}, {v(t+17)}, 4, {v(vD1s)}
        v_add_u32 {v(vD1s)}, 4096, {v(vD1s)}""")
        for P in (2, 1, 0): p(f"v_add_u32 {v(vD1+P)}, {4096 + 64*P - 1024*P}, {v(vD1)}")
        for vv in (3, 2, 1, 0): p(f"v_add_u32 {v(vD2+vv)}, {4096 + (vv>>1)*16384 + (vv&1)*64 - 1024*vv}, {v(vD2)}")
        p(f"""
        s_mul_i32 {s(sGQ)}, {s(sW)}, {16*3072}
        s_lshl_b32 {s(sT)}, {s(sC16)}, 6
        s_add_u32 {s(sGQ)}, {s(sGQ)}, {s(sT)}
        s_lshr_b32 {s(sT)}, {s(sW)}, 1
        s_and_b32 {s(sT+1)}, {s(sW)}, 1
        s_mul_i32 {s(sLQ)}, {s(sT)}, 6144
        s_mul_i32 {s(sT+2)}, {s(sT+1)}, 3072
        s_add_u32 {s(sLQ)}, {s(sLQ)}, {s(sT+2)}
        s_mul_i32 {s(sL1)}, {s(sT)}, 7168
        s_add_u32 {s(sL1)}, {s(sL1)}, {s(sT+2)}
        s_mul_i32 {s(sL1s)}, {s(sW)}, 7168
        s_lshr_b32 {s(sT+3)}, {s(sC16)}, 1
        s_and_b32 {s(sT+4)}, {s(sC16)}, 1
        s_mul_i32 {s(sT+5)}, {s(sT+3)}, 448
        s_lshl_b32 {s(sT+6)}, {s(sT+4)}, 8
        s_add_u32 {s(sT+6)}, {s(sT+6)}, {s(sT+5)}
        s_mul_i32 {s(sG1)}, {s(sW)}, {16*3584}
        s_add_u32 {s(sG1)}, {s(sG1)}, {s(sT+6)}
        s_lshl_b32 {s(sT+6)}, {s(sT+4)}, 5
        s_add_u32 {s(sT+6)}, {s(sT+6)}, {s(sT+5)}
        s_add_u32 {s(sT+6)}, {s(sT+6)}, 192
        s_mul_i32 {s(sG1s)}, {s(sW)}, {32*3584}
        s_add_u32 {s(sG1s)}, {s(sG1s)}, {s(sT+6)}
        s_mul_i32 {s(sT+5)}, {s(sT+3)}, {7*1024}
        s_lshl_b32 {s(sT+6)}, {s(sT+4)}, 12
        s_add_u32 {s(sHp)}, {s(sT+5)}, {s(sT+6)}
        s_lshl_b32 {s(sT+6)}, {s(sT+4)}, 3
        s_add_u32 {s(sHs)}, {s(sT+5)}, {s(sT+6)}
        s_add_u32 {s(sHs)}, {s(sHs)}, {3*1024}
        s_lshl_b32 {s(sT+5)}, {s(sC8)}, 7
        s_mul_i32 {s(sG2)}, {s(sW)}, {448*1024}
        s_add_u32 {s(sG2)}, {s(sG2)}, {s(sT+5)}
        s_mul_i32 {s(sGO)}, {s(sW)}, {128*1024}
        s_add_u32 {s(sGO)}, {s(sGO)}, {s(sT+5)}
        s_mul_i32 {s(sHl)}, {s(sW)}, {4*1040}
        s_add_u32 {s(sHl)}, {s(sHl)}, {HIMG}
        s_lshl_b32 {s(sHsrc)}, {s(sT+1)}, 3
        s_xor_b32 {s(sT+5)}, {s(sT)}, 1
        s_add_u32 {s(sHsrc)}, {s(sHsrc)}, {s(sT+5)}
        s_lshl_b32 {s(sHsrc)}, {s(sHsrc)}, 10
        s_lshl_b32 {s(sX)}, {s(sG)}, 17
        s_add_u32 {s(sX)}, {s(sX)}, {P0}
        s_mul_i32 {s(sH)}, {s(sG)}, 0x70000
        s_add_u32 {s(sH)}, {s(sH)}, {P1}
        s_lshl_b32 {s(sST)}, {s(sG)}, 13
        s_add_u32 {s(sST)}, {s(sST)}, {STATS}
        s_cmp_eq_u32 {s(sW)}, 0
        s_cselect_b32 {s(sPUB)}, 1, 0
        s_mov_b32 {s(sPUB+1)}, 0
        s_and_b32 {s(sHPUB)}, {s(sPUB)}, {s(sRQ)}
        s_mov_b32 {s(sHPUB+1)}, 0
        s_and_b32 {s(sT+5)}, {s(sT)}, {s(sRQ)}
        s_cmp_eq_u32 {s(sT+5)}, 1
        s_cselect_b32 {s(sHM)}, 0xff00ff00, 0
        s_mov_b32 {s(sHM+1)}, {s(sHM)}
        s_mov_b32 {s(sEPS)}, 0x3727c5ac
        s_mov_b32 {s(sINV)}, 0x3b000000""")
        p(f"v_add_u32 {v(vRW)}, {s(sL2)}, {v(vL16)}\nv_add_u32 {v(vRW)}, {RBASE}, {v(vRW)}")
        for u in range(1, 4):
            p(f"""
            s_sub_u32 {s(sT+5)}, {s(sW)}, {u}
            s_and_b32 {s(sT+5)}, {s(sT+5)}, 3
            s_lshl_b32 {s(sT+5)}, {s(sT+5)}, 12
            s_add_u32 {s(sT+5)}, {s(sT+5)}, {RBASE}
            v_add_u32 {v(vRR+u-1)}, {s(sT+5)}, {v(vL16)}""")
        p(f"""
        s_add_u32 {s(sT+5)}, {s(sL2)}, {KVX}
        v_add_u32 {v(vKp)}, {s(sT+5)}, {v(vL16)}
        v_add_u32 {v(vKW)}, 4096, {v(vKp)}
        v_add_u32 {v(vVp)}, 8, {v(vKp)}
        v_add_u32 {v(vKp+1)}, 2048, {v(vKp)}
        v_add_u32 {v(vVp+1)}, 2048, {v(vVp)}
        v_xor_b32 {v(t+16)}, 128, {v(vL16)}
        v_add_u32 {v(t+16)}, {KVX}, {v(t+16)}
        v_xor_b32 {v(t+17)}, 512, {v(vL16)}
        v_add_u32 {v(t+17)}, {KVX+8}, {v(t+17)}
        s_cmp_eq_u32 {s(sW)}, 0
        s_cselect_b64 vcc, -1, 0
        v_cndmask_b32 {v(vKp+1)}, {v(vKp+1)}, {v(t+16)}, vcc
        v_cndmask_b32 {v(vVp+1)}, {v(vVp+1)}, {v(t+17)}, vcc
        s_lshl_b32 {s(sT+5)}, {s(sT+1)}, 10
        s_lshl_b32 {s(sT+6)}, {s(sT)}, 3
        s_add_u32 {s(sT+5)}, {s(sT+5)}, {s(sT+6)}
        s_add_u32 {s(sT+5)}, {s(sT+5)}, {KVX}
        v_add_u32 {v(vKH)}, {s(sT+5)}, {v(vL16)}""")
        p(f"""
        s_lshl_b32 {s(sT+5)}, {s(sT+1)}, 5
        v_xor_b32 {v(vHA)}, {s(sT+5)}, {v(vT0)}
        s_add_u32 {s(sT+5)}, {s(sT)}, 1
        s_lshl_b32 {s(sT+5)}, {s(sT+5)}, 10
        v_add_u32 {v(vHA)}, {s(sT+5)}, {v(vHA)}""")
        p(f"""
        s_or_b32 {s(sT+5)}, {s(sG)}, {s(sW)}
        s_cmp_eq_u32 {s(sT+5)}, 0
        s_cselect_b32 {s(sT+5)}, 100, 9
        v_lshlrev_b32 {v(t+16)}, 2, {v(t+1)}
        v_sub_u32 {v(t+16)}, {v(t)}, {v(t+16)}
        v_mov_b32 {v(t+18)}, 0xf149f2ca""")
        for r in range(4):
            p(f"""
            v_subrev_u32 {v(t+17)}, {r}, {v(t+16)}
            v_cmp_gt_u32 vcc, 8, {v(t+17)}
            v_cndmask_b32 {v(vBC+r)}, {v(t+18)}, 0, vcc
            v_add_u32 {v(t+17)}, {s(sT+5)}, {v(t+17)}
            v_cmp_ge_i32 vcc, 0, {v(t+17)}
            v_cndmask_b32 {v(vBP+r)}, {v(t+18)}, 0, vcc""")
        p(f"""
        v_lshlrev_b32 {v(vSt)}, 4, {v(t)}
        v_lshl_add_u32 {v(vSt)}, {v(t+4)}, 2, {v(vSt)}
        v_mul_u32_u24 {v(vHalo)}, 1040, {v(t)}
        v_lshl_add_u32 {v(vHalo)}, {v(t+1)}, 3, {v(vHalo)}
        v_add_u32 {v(vHalo)}, {HIMG}, {v(vHalo)}
        s_lshl_b32 {s(sT+5)}, {s(sW)}, 8
        s_add_u32 {s(sT+5)}, {s(sT+5)}, {RS}
        v_lshlrev_b32 {v(vCSl)}, 2, {v(t)}
        v_lshlrev_b32 {v(vCSr)}, 4, {v(t+1)}
        v_add_u32 {v(vRSw)}, {s(sT+5)}, {v(vCSl)}
        v_add_u32 {v(vRSr)}, {s(sT+5)}, {v(vCSr)}
        v_add_u32 {v(vCSl)}, {TAB}, {v(vCSl)}
        v_add_u32 {v(vCSr)}, {TAB}, {v(vCSr)}
        v_mul_u32_u24 {v(vHSa)}, 1040, {v(t+1)}
        v_lshl_add_u32 {v(vHSa)}, {v(t)}, 6, {v(vHSa)}
        v_add_u32 {v(vHSa)}, {s(sHl)}, {v(vHSa)}
        s_lshl_b32 {s(sT+5)}, {s(sG)}, 14
        s_add_u32 {s(sT+5)}, {s(sT+5)}, {HALO - 16*1024}
        s_lshl_b32 {s(sT+6)}, {s(sT+1)}, 10
        s_add_u32 {s(sT+5)}, {s(sT+5)}, {s(sT+6)}
        s_lshl_b32 {s(sT+6)}, {s(sC8)}, 7
        s_add_u32 {s(sT+5)}, {s(sT+5)}, {s(sT+6)}
        v_add_u32 {v(vHst)}, {s(sT+5)}, {v(t+6)}""")
        for i in range(4): p(f"v_mov_b32 {v(vONE+i)}, 0x3f803f80")
        p(f"""
        v_add_u32 {v(vE0)}, {C0}, {v(vE0)}
        v_add_u32 {v(vE1)}, {C1}, {v(vE1)}
        v_add_u32 {v(vHE0)}, {C0}, {v(t+12)}
        v_add_u32 {v(vHE1)}, {C1}, {v(t+13)}
        v_add_u32 {v(vHo)}, 128, {v(vHo)}
        v_readlane_b32 {s(sF0)}, {v(vE0)}, {s(sC16)}
        v_readlane_b32 {s(sF1)}, {v(vE1)}, {s(sC16)}
        v_readlane_b32 {s(sHF0)}, {v(t+14)}, {s(sC8)}
        v_readlane_b32 {s(sHF1)}, {v(t+15)}, {s(sC8)}
        s_add_u32 {s(sF0)}, {s(sF0)}, {s(sXCC)}
        s_add_u32 {s(sHF0)}, {s(sHF0)}, {C0}
        s_add_u32 {s(sHF1)}, {s(sHF1)}, {C1}""")
    def store_m(self, lines):
        p = self.p
        A = sub(p); B = sub(p)
        for l in lines:
            if l.startswith("buffer_store"): A(l, tag="st"); B(l + " sc1", tag="st")
            else: A(l); B(l)
        p(f"s_cmp_lg_u32 {s(sMODE)}, 0")
        p.ifelse("s_cbranch_scc1", A, B)
    def publish(self, stage, halo=False):
        p = self.p; t = TMP
        p(f"s_add_u32 {s(sT)}, {s(sF0)}, {8*stage}\nv_mov_b32 {v(t)}, {s(sT)}\nv_mov_b32 {v(t+1)}, {s(sF1)}")
        if halo: p(f"v_mov_b32 {v(t+2)}, {s(sHF0)}\nv_mov_b32 {v(t+3)}, {s(sHF1)}")
        p.wait_vm("st"); p.wait_lg_all()
        p("s_barrier")
        p(f"s_mov_b64 exec, {s(sPUB,2)}")
        l = f"buffer_store_dwordx2 {v(t,2)}, off, {s(SWS,4)}, {s(sFoff)}"
        if stage == 0: p(l, tag="fl")
        else: self.store_m([l])
        if halo:
            p(f"s_mov_b64 exec, {s(sHPUB,2)}")
            p(f"buffer_store_dwordx2 {v(t+2,2)}, off, {s(SWS,4)}, {s(sHFoff)} sc1", tag="fl")
        p("s_mov_b64 exec, -1")
    def poll(self, stage, halo=False):
        p = self.p; t = TMP + 4
        lp = p.newlabel("POLL"); ld = p.newlabel("PDONE"); ln = p.newlabel("PNOREP")
        off, e0, e1, st8 = (vHo, vHE0, vHE1, 0) if halo else (vFo, vE0, vE1, 8*stage)
        p(f"v_add_u32 {v(t+2)}, {st8}, {v(e0)}\ns_mov_b32 {s(sCNT)}, 0")
        rep = ""
        if stage == 0 and not halo:
            rep = f"""s_and_b32 {s(sT)}, {s(sCNT)}, 7
            s_cmp_eq_u32 {s(sT)}, 7
            s_cbranch_scc0 {ln}
            s_mov_b64 exec, {s(sPUB,2)}
            buffer_store_dwordx2 {v(TMP,2)}, off, {s(SWS,4)}, {s(sFoff)} sc1
            s_mov_b64 exec, -1
            {ln}:"""
        skip = ""
        if halo: skip = f"s_cmp_eq_u32 {s(sG)}, 0\ns_cbranch_scc1 {ld}"
        p.wait_vm_all()
        p.raw(f"""{skip}
        {lp}:
        buffer_load_dwordx2 {v(t,2)}, {v(off)}, {s(SWS,4)}, 0 offen sc1
        s_waitcnt vmcnt(0)
        v_sub_u32 {v(t)}, {v(t)}, {v(t+2)}
        v_cmp_eq_u32_e64 {s(sM,2)}, {v(t+1)}, {v(e1)}
        v_cmp_gt_u32 vcc, {128-st8}, {v(t)}
        s_nop 1
        s_and_b64 vcc, vcc, {s(sM,2)}
        s_cmp_eq_u64 vcc, -1
        s_cbranch_scc1 {ld}
        {rep}
        s_add_u32 {s(sCNT)}, {s(sCNT)}, 1
        s_cmp_lt_u32 {s(sCNT)}, 0x40000
        s_cbranch_scc1 {lp}
        s_branch L_END
        {ld}:""", clears_vm=True)
        if stage == 0 and not halo:
            p(f"""v_and_b32 {v(t)}, 7, {v(t)}
            v_cmp_ne_u32 vcc, {s(sXCC)}, {v(t)}
            s_cmp_lg_u64 vcc, 0
            s_cselect_b32 {s(sMODE)}, 1, 0""")
            if self.force_fallback: p(f"s_mov_b32 {s(sMODE)}, 1")
            if self.distinct: p(f"s_mov_b32 {s(sD0)}, 0x200000\ns_mov_b32 {s(sD1)}, 0x800000")
            else: p(f"s_lshl_b32 {s(sD0)}, {s(sMODE)}, 21\ns_lshl_b32 {s(sD1)}, {s(sMODE)}, 23")
    def dma(self, srd, vo, sg, goff, sl, loff, tag, imm=0):
        L = [f"s_add_u32 m0, {s(sl)}, {loff}", f"s_add_u32 {s(sT+8)}, {s(sg)}, {goff}"]
        return L, Ins(f"buffer_load_dwordx4 {v(vo)}, {s(srd,4)}, {s(sT+8)} offen{f' offset:{imm}' if imm else ''} lds", tag)
    def dma_wq(self, units):
        out = []
        for u in units:
            L, i0 = self.dma(SWQ, vDq, sGQ, u*64*3072, sLQ, WQ(2*u), "wq")
            out.append(L + [i0])
            out.append([Ins(f"buffer_load_dwordx4 {v(vDq)}, {s(SWQ,4)}, {s(sT+8)} offen offset:1024 lds", "wq")])
            out.append([Ins(f"buffer_load_dwordx4 {v(vDq)}, {s(SWQ,4)}, {s(sT+8)} offen offset:2048 lds", "wq")])
        return out
    def dma_w1(self, units, singles, tag="w1"):
        out = []
        for u in units:
            L, i0 = self.dma(SW1, vD1, sG1, u*64*3584, sL1, W1A(2*u), tag); out.append(L + [i0])
            for P in (1, 2): out.append([Ins(f"buffer_load_dwordx4 {v(vD1+P)}, {s(SW1,4)}, {s(sT+8)} offen offset:{1024*P} lds", tag)])
        for u in singles:
            L, i0 = self.dma(SW1, vD1s, sG1s, u*128*3584, sL1s, W1A(4*u) + 6144, tag); out.append(L + [i0])
        return out
    def dma_priv(self, srd, sg, ks, group, tag):
        L, i0 = self.dma(srd, vD2, sg, 32*ks*1024, sL2, group, tag)
        return [L + [i0]] + [[Ins(f"buffer_load_dwordx4 {v(vD2+vv)}, {s(srd,4)}, {s(sT+8)} offen offset:{1024*vv} lds", tag)] for vv in (1, 2, 3)]
    def stats_from(self, r, nm, rs):
        return [f"v_add_f32 {v(r)}, {v(r)}, {v(r+2)}", f"v_add_f32 {v(r+1)}, {v(r+1)}, {v(r+3)}",
                f"v_permlane16_swap_b32 {v(r)}, {v(r+1)}", f"v_add_f32 {v(r)}, {v(r)}, {v(r+1)}",
                f"v_mov_b32 {v(r+1)}, {v(r)}", f"v_permlane32_swap_b32 {v(r)}, {v(r+1)}", f"v_add_f32 {v(r)}, {v(r)}, {v(r+1)}",
                f"v_mov_b32 {v(r+1)}, {v(r)}", f"v_permlane16_swap_b32 {v(r)}, {v(r+1)}"] + self.stats_fin(r, r+1, nm, rs)
    def stats_fin(self, S, SS, nm, rs):
        return [f"v_mul_f32 {v(nm)}, 0xbb000000, {v(S)}", f"v_mul_f32 {v(SS)}, {s(sINV)}, {v(SS)}",
                f"v_fma_f32 {v(SS)}, -{v(nm)}, {v(nm)}, {v(SS)}", f"v_max_f32 {v(SS)}, 0, {v(SS)}",
                f"v_add_f32 {v(SS)}, {s(sEPS)}, {v(SS)}", f"v_rsq_f32 {v(rs)}, {v(SS)}"]
    def finish_x(self, k, final=False, halo=False):
        p = self.p; t = TMP
        for i in range(8): p(f"v_cvt_pk_bf16_f32 {v(t+i)}, {v(vXR+2*i)}, {v(vXR+2*i+1)}")
        if final:
            for a0, a1 in ((0, 2), (1, 3), (4, 6), (5, 7)): p(f"v_permlane16_swap_b32 {v(t+a0)}, {v(t+a1)}")
            p(f"buffer_store_dwordx4 {v(t,4)}, {v(vOut)}, {s(SOUT,4)}, 0 offen", tag="st")
            p(f"buffer_store_dwordx4 {v(t+4,4)}, {v(vOut)}, {s(SOUT,4)}, 0 offen offset:64", tag="st")
            return
        p(f"""s_lshl_b32 {s(sT)}, {s(sTown)}, 14
        s_lshl_b32 {s(sT+1)}, {s(sC8)}, 11
        s_add_u32 {s(sT)}, {s(sT)}, {s(sT+1)}
        s_add_u32 {s(sT)}, {s(sT)}, {s(sX)}""")
        xs = [f"buffer_store_dwordx4 {v(t,4)}, {v(vL16)}, {s(SWS,4)}, {s(sT)} offen",
              f"buffer_store_dwordx4 {v(t+4,4)}, {v(vL16)}, {s(SWS,4)}, {s(sT)} offen offset:1024"]
        if k == 0:
            for l in xs: p(l + " sc1", tag="st")
        else: self.store_m(xs)
        a = t + 8
        p(pk("add", a, ("p", vXR), ("p", vXR+2))); p(pk("mul", a+2, ("p", vXR), ("p", vXR)))
        p(pk("fma", a+2, ("p", vXR+2), ("p", vXR+2), ("p", a+2)))
        for i in range(2, 8):
            p(pk("add", a, ("p", a), ("p", vXR+2*i))); p(pk("fma", a+2, ("p", vXR+2*i), ("p", vXR+2*i), ("p", a+2)))
        p(f"""v_add_f32 {v(a)}, {v(a)}, {v(a+1)}
        v_add_f32 {v(a+1)}, {v(a+2)}, {v(a+3)}
        v_permlane16_swap_b32 {v(a)}, {v(a+1)}
        v_add_f32 {v(a)}, {v(a)}, {v(a+1)}
        v_mov_b32 {v(a+1)}, {v(a)}
        v_permlane32_swap_b32 {v(a)}, {v(a+1)}
        v_add_f32 {v(a)}, {v(a)}, {v(a+1)}
        s_lshl_b32 {s(sT)}, {s(sTown)}, 10
        s_lshr_b32 {s(sT+1)}, {s(sC8)}, 1
        s_lshl_b32 {s(sT+1)}, {s(sT+1)}, 8
        s_add_u32 {s(sT)}, {s(sT)}, {s(sT+1)}
        s_and_b32 {s(sT+1)}, {s(sC8)}, 1
        s_lshl_b32 {s(sT+1)}, {s(sT+1)}, 3
        s_add_u32 {s(sT)}, {s(sT)}, {s(sT+1)}
        s_add_u32 {s(sT)}, {s(sT)}, {s(sST)}""")
        l = f"buffer_store_dword {v(a)}, {v(vSt)}, {s(SWS,4)}, {s(sT)} offen"
        if k == 0: p(l + " sc1", tag="st")
        else: self.store_m([l])
        if halo:
            b = t + 12
            for i in range(8): p(f"v_mov_b32 {v(b+i)}, {v(t+i)}")
            for a0, a1 in ((0, 2), (1, 3), (4, 6), (5, 7)): p(f"v_permlane16_swap_b32 {v(b+a0)}, {v(b+a1)}")
            p(f"s_mov_b64 exec, {s(sHM,2)}")
            p(f"buffer_store_dwordx4 {v(b,4)}, {v(vHst)}, {s(SWS,4)}, 0 offen sc1", tag="st")
            p(f"buffer_store_dwordx4 {v(b+4,4)}, {v(vHst)}, {s(SWS,4)}, 0 offen offset:64 sc1", tag="st")
            p("s_mov_b64 exec, -1")
        for i in range(8):
            p(f"v_lshlrev_b32 {v(vXR+2*i)}, 16, {v(t+i)}\nv_and_b32 {v(vXR+2*i+1)}, 0xffff0000, {v(t+i)}")
    def x_items(self, xb):
        out = []
        for sk in range(16):
            for Tl in range(2):
                it = []
                if sk and sk % 4 == 0: it.append(f"s_add_u32 {s(sXA+Tl)}, {s(sXA+Tl)}, 4096")
                it.append(Ins(f"buffer_load_dwordx4 {a_(xb + (sk*2+Tl)*4,4)}, {v(vL16)}, {s(SWS,4)}, {s(sXA+Tl)} offen offset:{(sk%4)*1024} sc1", f"xb{sk}"))
                out.append(it)
        return out
    def x_setup(self):
        return [f"s_lshl_b32 {s(sXA+2)}, {s(sW)}, 11", f"s_add_u32 {s(sXA+2)}, {s(sXA+2)}, {s(sST)}",
                f"s_lshl_b32 {s(sXA)}, {s(sW)}, 15", f"s_add_u32 {s(sXA)}, {s(sXA)}, {s(sX)}", f"s_add_u32 {s(sXA+1)}, {s(sXA)}, 16384"]
    def stat_items(self):
        return [Ins(f"buffer_load_dwordx4 {v(TMP+8,4)}, {v(vL16)}, {s(SWS,4)}, {s(sXA+2)} offen sc1", "stt"),
                Ins(f"buffer_load_dwordx4 {v(TMP+12,4)}, {v(vL16)}, {s(SWS,4)}, {s(sXA+2)} offen offset:1024 sc1", "stt")]
    def trpair(self, dst, b0, b1, addr, stride_rd, tag=None):
        out = []
        for e, b in ((0, b0), (1, b1)):
            for rd in range(2):
                r, o = lds(b, addr + rd*stride_rd)
                out.append(Ins(f"ds_read_b64_tr_b16 {v(dst + 4*e + 2*rd, 2)}, {r} offset:{o}", tag))
        return out
    def stash(self, areg, chunks, write):
        out = []
        for n in chunks:
            r, o = lds(vSA, 4096*n)
            out.append(f"ds_write_b128 {r}, {a_(areg + 4*n,4)} offset:{o}" if write else f"ds_read_b128 {a_(areg + 4*n,4)}, {r} offset:{o}")
        return out
    def touch(self, srd, base_sgpr_lines, nlanes, tag="pt"):
        L = list(base_sgpr_lines)
        if nlanes < 64: L.append(f"s_mov_b64 exec, {hex((1 << nlanes) - 1)}" if nlanes <= 31 else f"s_bfm_b64 exec, {nlanes}, 0")
        L.append(Ins(f"buffer_load_dword {v(vTch)}, {v(vL128)}, {s(srd,4)}, {s(sT+9)} offen sc1", tag))
        if nlanes < 64: L.append("s_mov_b64 exec, -1")
        return L
    def stage0(self):
        p = self.p
        for a0, a1 in ((0, 2), (1, 3), (4, 6), (5, 7)): p(f"v_permlane16_swap_b32 {v(ACC+a0)}, {v(ACC+a1)}")
        for i in range(8):
            p(f"v_lshlrev_b32 {v(vXR+2*i)}, 16, {v(ACC+i)}\nv_and_b32 {v(vXR+2*i+1)}, 0xffff0000, {v(ACC+i)}")
        self.finish_x(0)
        for d in self.dma_wq(range(8)): p.add(d)
        self.publish(0)
    def pretouch_h(self):
        return self.touch(SWS, [f"s_lshl_b32 {s(sT+9)}, {s(sC16)}, 2", f"s_add_u32 {s(sT+9)}, {s(sT+9)}, {s(sW)}",
                                f"s_mul_i32 {s(sT+9)}, {s(sT+9)}, {7*1024}", f"s_add_u32 {s(sT+9)}, {s(sT+9)}, {s(sH)}"], 56)
    def pretouch_st(self):
        return self.touch(SWS, [f"s_lshl_b32 {s(sT+9)}, {s(sW)}, 17", f"s_add_u32 {s(sT+9)}, {s(sT+9)}, {s(sST)}"], 64)
    def warm(self, srd, nbytes, shift):
        lines = nbytes // 128; per = lines // 1024
        return self.touch(srd, [f"s_lshl_b32 {s(sT+9)}, s2, 2", f"s_add_u32 {s(sT+9)}, {s(sT+9)}, {s(sW)}",
                                f"s_mul_i32 {s(sT+9)}, {s(sT+9)}, {per*128}", f"s_add_u32 {s(sT+9)}, {s(sT+9)}, {shift}"], per)
    def gemm_loop(self, nk, mf, reads, vq, fq, vslots, fslots, nread_half, extra=None, xtag="xb"):
        p = self.p
        for sk in range(nk):
            m = mf(sk); pl = []
            pl.append(("pre", [W2([f"{xtag}{sk}"], [f"rd{sk}a"])], 0))
            pl.append(("pre", [W2([], [f"rd{sk}b"])], nread_half))
            if extra: pl += extra(sk)
            if sk + 1 < nk: pl.append((reads(sk+1), 0, 1))
            n = min(len(vq), len(vslots(sk)))
            for g in vslots(sk)[:n]: pl.append(([vq.pop(0)], g, 1))
            n = min(len(fq), len(fslots(sk)))
            for g in fslots(sk)[:n]: pl.append(([fq.pop(0)], g, 1))
            p.add(gaps(m, *pl))
    def csum_pass(self, base_expr_lines, ntile_pairs, blk, swapped_pairs, single, vq):
        p = self.p; R = TMP + 16; b0, b1, bs = TMP + 8, TMP + 9, TMP + 10
        p(base_expr_lines)
        p(f"v_add_u32 {v(b0)}, {s(sT)}, {v(vT0)}\nv_add_u32 {v(b1)}, {s(sT)}, {v(vT1)}\nv_add_u32 {v(bs)}, {s(sT)}, {v(vTs)}")
        nt = 2*ntile_pairs + (1 if single else 0)
        def rds(n):
            buf = ACC + (n & 1)*28; out = []
            for P in range(ntile_pairs):
                for e, b in ((0, b0), (1, b1)):
                    for rd in range(2):
                        out.append(f"ds_read_b64_tr_b16 {v(buf + 8*P + 4*e + 2*rd, 2)}, {v(b)} offset:{n*blk + rd*3072 + P*1024}")
            if single:
                for rd in range(2): out.append(f"ds_read_b64_tr_b16 {v(buf + 24 + 2*rd, 2)}, {v(bs)} offset:{n*blk + 6144 + rd*512}")
            return out
        p.add(rds(0))
        for n in range(4):
            buf = ACC + (n & 1)*28
            nx = rds(n+1) if n < 3 else []
            for ti in range(nt):
                c = "0" if n == 0 else v(R+4*ti, 4)
                if (ti >> 1) in swapped_pairs: p(f"v_mfma_f32_16x16x32_bf16 {v(R+4*ti,4)}, {v(vONE,4)}, {v(buf+4*ti,4)}, {c}")
                else: p(f"v_mfma_f32_16x16x32_bf16 {v(R+4*ti,4)}, {v(buf+4*ti,4)}, {v(vONE,4)}, {c}")
                p.add(nx[2*ti:2*ti+2])
                if ti in (1, 5) and vq: p.add(vq.pop(0))
        p(f"s_lshl_b32 {s(sT)}, {s(sW)}, 9\nv_add_u32 {v(b0)}, {s(sT)}, {v(vCSr)}\nv_add_u32 {v(b1)}, {s(sT)}, {v(vCSl)}")
        p(f"s_mov_b32 {s(sM)}, 0x00010001\ns_mov_b32 {s(sM+1)}, 0x00010001\ns_mov_b64 exec, {s(sM,2)}")
        for ti in range(nt):
            if (ti >> 1) not in swapped_pairs: p(f"ds_write_b128 {v(b0)}, {v(R+4*ti,4)} offset:{CSP-TAB + ti*64}")
        if swapped_pairs:
            p("s_mov_b64 exec, 0xffff")
            for ti in range(nt):
                if (ti >> 1) in swapped_pairs: p(f"ds_write_b32 {v(b1)}, {v(R+4*ti)} offset:{CSP-TAB + ti*64}")
        p("s_mov_b64 exec, -1")
    def csum_get(self, first, nreg_tiles, nlane_tiles, R, final_off):
        p = self.p; t = AF
        if not first:
            for ti in range(nreg_tiles): p(f"ds_read_b128 {v(R+4*ti,4)}, {v(vCSr)} offset:{final_off + ti*64}")
            for k in range(nlane_tiles): p(f"ds_read_b32 {v(R+4*nreg_tiles+k)}, {v(vCSl)} offset:{final_off + (nreg_tiles+k)*64}")
            return
        for ti in range(nreg_tiles):
            p(f"ds_read_b128 {v(R+4*ti,4)}, {v(vCSr)} offset:{CSP-TAB + ti*64}")
            for w in range(1, 4): p(f"ds_read_b128 {v(t+4*(w-1),4)}, {v(vCSr)} offset:{CSP-TAB + w*512 + ti*64}")
            for w in range(1, 4):
                for h in range(2): p(pk("add", R+4*ti+2*h, ("p", R+4*ti+2*h), ("p", t+4*(w-1)+2*h)))
            p(f"ds_write_b128 {v(vCSr)}, {v(R+4*ti,4)} offset:{final_off + ti*64}")
        for k in range(nlane_tiles):
            d = R + 4*nreg_tiles + k; ti = nreg_tiles + k
            p(f"ds_read_b32 {v(d)}, {v(vCSl)} offset:{CSP-TAB + ti*64}")
            for w in range(1, 4): p(f"ds_read_b32 {v(t+w)}, {v(vCSl)} offset:{CSP-TAB + w*512 + ti*64}")
            for w in range(1, 4): p(f"v_add_f32 {v(d)}, {v(d)}, {v(t+w)}")
            p(f"ds_write_b32 {v(vCSl)}, {v(d)} offset:{final_off + ti*64}")
    def qkv(self, layer):
        p = self.p
        st = 0 if layer == 0 else 4
        XB = 0 if layer == 0 else 128
        HB = 224
        p.add(self.x_setup())
        self.poll(st)
        if layer == 1: self.poll(0, halo=True)
        p.wait_lg_all()
        p("s_barrier")
        self.stamp(f"qkv{layer}_go")
        xi = self.x_items(XB)
        p.add(xi[:4])
        Q = lambda T, h: ACC + (T*2+h)*4
        Kk = lambda T, h: ACC + 16 + (T*2+h)*4
        V = lambda T, h: ACC + 32 + (T*2+h)*4
        HA = ACC + 48
        def reads(sk):
            out = []
            for P in range(3):
                r = self.trpair(AF + (sk & 1)*28 + 8*P, vT0, vT1, WQ(sk) + P*1024, 3072)
                out += r
            for i, r in enumerate(out): r.tag = f"rd{sk}{'a' if i < 6 else 'b'}"
            return out
        p.add(reads(0)); p.add(xi[4:6])
        srd = SX if layer == 0 else SWS
        hs0 = [f"s_lshl_b32 {s(sT+10)}, {s(sG)}, 17", f"s_sub_u32 {s(sT+10)}, {s(sT+10)}, 16384"] if layer == 0 else \
              [f"s_lshl_b32 {s(sT+10)}, {s(sG)}, 14", f"s_add_u32 {s(sT+10)}, {s(sT+10)}, {HALO - 16384}"]
        hs0 += [f"s_add_u32 {s(sT+10)}, {s(sT+10)}, {s(sHsrc)}", f"s_cmp_eq_u32 {s(sG)}, 0", f"s_cselect_b32 {s(sT+10)}, 0x40000000, {s(sT+10)}"]
        hi = []
        for n in range(4):
            L, i0 = self.dma(srd, vL16, sT+10, n*2048, sHl, n*1040, "halo"); hi.append(L + [i0])
        vq = xi[6:10] + self.stat_items() + xi[10:] + hi
        if layer == 0:
            vq += [self.pretouch_h(), self.pretouch_st(), self.warm(SWO, 512*1024, 4096), self.warm(SW1, 512*3584, 4096), self.warm(SW2, 1792*1024, 4096)]
            vq.append([f"s_sub_u32 {s(sT)}, {s(sF0)}, {s(sXCC)}", f"s_add_u32 {s(sT)}, {s(sT)}, {(0x1000 - C0) & 0xffffffff}",
                       f"s_add_u32 {s(sT+1)}, {s(sF1)}, {(0x10 - C1) & 0xffffffff}", f"v_mov_b32 {v(TMP)}, {s(sT)}", f"v_mov_b32 {v(TMP+1)}, {s(sT+1)}",
                       f"s_sub_u32 {s(sT+2)}, {s(sFoff)}, 128", f"s_mov_b64 exec, {s(sPUB,2)}",
                       Ins(f"buffer_store_dwordx2 {v(TMP,2)}, off, {s(SWS,4)}, {s(sT+2)} sc1", "ep"), "s_mov_b64 exec, -1"])
        for ks in range(2): vq += self.dma_priv(SWO, sGO, ks, WOG[ks], "wo")
        fq = hs0 + self.stats_from(TMP+8, vNM, vRSD) + self.stats_from(TMP+12, vNM+1, vRSD+1)
        for Tl in range(2):
            fq += [f"ds_write_b32 {v(vRSw)}, {v(vNM+Tl)} offset:{Tl*128}", f"ds_write_b32 {v(vRSw)}, {v(vRSD+Tl)} offset:{Tl*128+64}"]
        if layer == 0: fq += self.stash(128, range(24), False)
        def mf(sk):
            buf = AF + (sk & 1)*28; main = []
            for P in range(3):
                for h in range(2):
                    for Tl in range(2):
                        d = (Q, Kk, V)[P](Tl, h); c = "0" if sk == 0 else v(d, 4)
                        A = v(buf + 8*P + 4*h, 4); B = a_(XB + (sk*2+Tl)*4, 4)
                        if P == 2: A, B = B, A
                        main.append(f"v_mfma_f32_16x16x32_bf16 {v(d,4)}, {A}, {B}, {c}")
            return main
        if layer == 0:
            pre = vq[:4]; del vq[:4]
            self.csum_pass(f"""s_and_b32 {s(sT)}, {s(sW)}, 1
            s_mul_i32 {s(sT)}, {s(sT)}, 24576
            s_cmp_lt_u32 {s(sW)}, 2
            s_cselect_b32 {s(sT+1)}, {48*KB}, 0
            s_add_u32 {s(sT)}, {s(sT)}, {s(sT+1)}""", 3, 6144, {2}, False, pre)
        self.gemm_loop(16, mf, reads, vq, fq, lambda sk: [1, 5, 9], lambda sk: ([3, 7] if sk < 2 else [3] if sk == 2 else [] if sk == 3 else [0, 2, 3, 6, 7, 10]), 6)
        p.add(fq)
        self.stamp(f"qkv{layer}_loop")
        bg = vq
        p.add(bg); bg = []
        p.wait_vm("halo")
        t = TMP + 8
        for n in range(4): p(f"ds_read_b128 {v(AF+4*n,4)}, {v(vHSa)} offset:{16*n}")
        p(f"v_mov_b32 {v(t)}, 0\nv_mov_b32 {v(t+1)}, 0\nv_mov_b32 {v(t+2)}, 0\nv_mov_b32 {v(t+3)}, 0")
        for n in range(16):
            p(f"v_dot2_f32_bf16 {v(t+2*(n&1))}, {v(AF+n)}, {v(vONE)}, {v(t+2*(n&1))}")
            p(f"v_dot2_f32_bf16 {v(t+1+2*(n&1))}, {v(AF+n)}, {v(AF+n)}, {v(t+1+2*(n&1))}")
        p(f"s_nop 2\nv_add_f32 {v(t)}, {v(t)}, {v(t+2)}\nv_add_f32 {v(t+1)}, {v(t+1)}, {v(t+3)}")
        for r in (8, 4, 2, 1):
            p(f"v_add_f32_dpp {v(t)}, {v(t)}, {v(t)} row_ror:{r} row_mask:0xf bank_mask:0xf")
            p(f"v_add_f32_dpp {v(t+1)}, {v(t+1)}, {v(t+1)} row_ror:{r} row_mask:0xf bank_mask:0xf")
        p.add(self.stats_fin(t, t+1, t+2, t+3))
        p(f"""s_lshl_b32 {s(sT)}, {s(sW)}, 4
        s_add_u32 {s(sT)}, {s(sT)}, {HS}
        v_lshrrev_b32 {v(t+4)}, 8, {v(vL16)}
        v_lshl_add_u32 {v(t+4)}, {v(t+4)}, 2, {s(sT)}
        ds_write_b32 {v(t+4)}, {v(t+2)}
        ds_write_b32 {v(t+4)}, {v(t+3)} offset:64""")
        p.wait_lg_all(); p("s_barrier")
        self.stamp(f"qkv{layer}_A")
        p(f"v_add_u32 {v(t)}, 0x10000, {v(vHA)}")
        def halo_arm(isV):
            q = sub(p)
            def rd(sk):
                b = AF + (sk & 7)*4; a = WQ(sk)
                r = v(t) if a >= 0x10000 else v(vHA)
                return [f"ds_read2_b64 {a_(HB + (sk&7)*4, 4)}, {v(vHalo)} offset0:{8*sk} offset1:{8*sk+4}",
                        f"ds_read_b64_tr_b16 {v(b,2)}, {r} offset:{a & 0xffff}", f"ds_read_b64_tr_b16 {v(b+2,2)}, {r} offset:{(a & 0xffff) + 3072}"]
            for sk in range(4): q.add(rd(sk))
            for sk in range(16):
                A = v(AF + (sk & 7)*4, 4); B = a_(HB + (sk&7)*4, 4)
                if isV: A, B = B, A
                q(f"v_mfma_f32_16x16x32_bf16 {v(HA,4)}, {A}, {B}, {'0' if sk == 0 else v(HA,4)}")
                if sk + 4 < 16: q.add(rd(sk+4))
            return q
        p(f"s_cmp_ge_u32 {s(sW)}, 2")
        p.ifelse("s_cbranch_scc1", halo_arm(False), halo_arm(True))
        CS = TMP + 16
        self.csum_get(layer == 0, 4, 2, CS, CSQ - TAB)
        VS = AF + 40
        for Tl in range(2):
            p(f"ds_read_b128 {v(VS+8*Tl,4)}, {v(vRSr)} offset:{Tl*128}\nds_read_b128 {v(VS+8*Tl+4,4)}, {v(vRSr)} offset:{Tl*128+64}")
        hs = TMP + 8
        A_ = sub(p); B_ = sub(p)
        A_(f"ds_read_b32 {v(hs)}, {v(vCSl)} offset:{HS-TAB}\nds_read_b32 {v(hs+1)}, {v(vCSl)} offset:{HS-TAB+64}")
        A_(f"s_and_b32 {s(sT)}, {s(sW)}, 1\ns_cmp_eq_u32 {s(sT)}, 1\ns_cselect_b64 vcc, -1, 0")
        for r in range(4): A_(f"v_cndmask_b32 {v(hs+4+r)}, {v(CS+8+r)}, {v(CS+12+r)}, vcc")
        for h in range(2):
            A_(pk("fma", HA+2*h, ("p", hs+4+2*h), ("b", hs), ("p", HA+2*h))); A_(pk("mul", HA+2*h, ("p", HA+2*h), ("b", hs+1)))
        A_.wait_lg_all()
        B_(f"ds_read_b128 {v(hs,4)}, {v(vCSr)} offset:{HS-TAB}\nds_read_b128 {v(hs+4,4)}, {v(vCSr)} offset:{HS-TAB+64}")
        B_(f"s_and_b32 {s(sT)}, {s(sW)}, 1\ns_cmp_eq_u32 {s(sT)}, 1\ns_cselect_b64 vcc, -1, 0")
        B_(f"v_cndmask_b32 {v(TMP+34)}, {v(CS+16)}, {v(CS+17)}, vcc")
        for h in range(2):
            B_(pk("fma", HA+2*h, ("p", hs+2*h), ("b", TMP+34), ("p", HA+2*h))); B_(pk("mul", HA+2*h, ("p", HA+2*h), ("p", hs+4+2*h)))
        B_.wait_lg_all()
        p(f"s_cmp_ge_u32 {s(sW)}, 2")
        p.ifelse("s_cbranch_scc1", A_, B_)
        p.wait_lg_all(); p("s_barrier")
        self.stamp(f"qkv{layer}_B")
        bg = []
        for ks in range(2, 4): bg += self.dma_priv(SWO, sGO, ks, WOG[ks], "wo")
        if layer == 0: bg += self.dma_w1(range(self.o["w1_attn"]), [])
        E = []
        E += [f"v_cvt_pk_bf16_f32 {v(HA)}, {v(HA)}, {v(HA+1)}", f"v_cvt_pk_bf16_f32 {v(HA+1)}, {v(HA+2)}, {v(HA+3)}", f"ds_write_b64 {v(vKH)}, {v(HA,2)}"]
        RQ = TMP + 8
        for Tl in range(2): E.append(f"v_mul_f32 {v(RQ+Tl)}, 0x3eb8aa3b, {v(vRSD+Tl)}")
        QP = lambda T, h: AF + (T*2+h)*2
        KP = lambda T, h: AF + 8 + (T*2+h)*2
        VV = lambda T, h: AF + 16 + (T*2+h)*4
        KR = lambda T, h: AF + 32 + (T*2+h)*2
        for Tl in range(2):
            for h in range(2):
                for hh in range(2):
                    E.append(pk("fma", Kk(Tl,h)+2*hh, ("p", CS+8+4*h+2*hh), ("b", vNM+Tl), ("p", Kk(Tl,h)+2*hh)))
                    E.append(pk("fma", V(Tl,h)+2*hh, ("p", VS+8*Tl+2*hh), ("b", CS+16+h), ("p", V(Tl,h)+2*hh)))
                for hh in range(2):
                    E.append(pk("mul", Kk(Tl,h)+2*hh, ("p", Kk(Tl,h)+2*hh), ("b", vRSD+Tl)))
                    E.append(pk("mul", V(Tl,h)+2*hh, ("p", V(Tl,h)+2*hh), ("p", VS+8*Tl+4+2*hh)))
                for hh in range(2):
                    E.append(f"v_cvt_pk_bf16_f32 {v(KP(Tl,h)+hh)}, {v(Kk(Tl,h)+2*hh)}, {v(Kk(Tl,h)+2*hh+1)}")
                    E.append(f"v_cvt_pk_bf16_f32 {v(VV(Tl,h)+2+hh)}, {v(V(Tl,h)+2*hh)}, {v(V(Tl,h)+2*hh+1)}")
                o = (Tl*2+h)*128
                if o < 256: E.append(f"ds_write2_b64 {v(vKW)}, {v(KP(Tl,h),2)}, {v(VV(Tl,h)+2,2)} offset0:{o} offset1:{o+1}")
                else: E += [f"ds_write_b64 {v(vKW)}, {v(KP(Tl,h),2)} offset:{o*8}", f"ds_write_b64 {v(vKW)}, {v(VV(Tl,h)+2,2)} offset:{o*8+8}"]
        for Tl in range(2):
            for h in range(2):
                for hh in range(2): E.append(pk("fma", Q(Tl,h)+2*hh, ("p", CS+4*h+2*hh), ("b", vNM+Tl), ("p", Q(Tl,h)+2*hh)))
                for hh in range(2): E.append(pk("mul", Q(Tl,h)+2*hh, ("p", Q(Tl,h)+2*hh), ("b", RQ+Tl)))
                for hh in range(2): E.append(f"v_cvt_pk_bf16_f32 {v(QP(Tl,h)+hh)}, {v(Q(Tl,h)+2*hh)}, {v(Q(Tl,h)+2*hh+1)}")
        E += [Ctl("wait_lg_all"), "s_barrier"]
        for Tl in range(2):
            for h in range(2):
                E += [f"ds_read_b64 {v(KR(Tl,h),2)}, {v(vKp+Tl)} offset:{h*1024}", f"ds_read_b64 {v(VV(Tl,h),2)}, {v(vVp+Tl)} offset:{h*1024}"]
        U = [(0,0),(0,1),(1,0),(1,1)]
        S = lambda u: ACC + 16 + u*8
        for u, (Tl, h) in enumerate(U): E.append(f"v_mfma_f32_16x16x16_bf16 {v(S(u)+4,4)}, {v(KP(Tl,h),2)}, {v(QP(Tl,h),2)}, {v(vBC,4)}")
        for u, (Tl, h) in enumerate(U): E.append(f"v_mfma_f32_16x16x16_bf16 {v(S(u),4)}, {v(KR(Tl,h),2)}, {v(QP(Tl,h),2)}, {v(vBP,4)}")
        M = TMP + 10
        for u in range(4): E.append(f"v_max3_f32 {v(M+4+u)}, {v(S(u)+4)}, {v(S(u)+5)}, {v(S(u)+6)}")
        for u in range(4): E.append(f"v_max3_f32 {v(M+u)}, {v(S(u))}, {v(S(u)+1)}, {v(S(u)+2)}")
        for u in range(4): E.append(f"v_max3_f32 {v(M+u)}, {v(M+u)}, {v(S(u)+3)}, {v(S(u)+7)}")
        for u in range(4): E.append(f"v_max_f32 {v(M+u)}, {v(M+u)}, {v(M+4+u)}")
        E += f"""v_permlane16_swap_b32 {v(M)}, {v(M+1)}
        v_permlane16_swap_b32 {v(M+2)}, {v(M+3)}
        v_max_f32 {v(M)}, {v(M)}, {v(M+1)}
        v_max_f32 {v(M+2)}, {v(M+2)}, {v(M+3)}
        v_permlane32_swap_b32 {v(M)}, {v(M+2)}
        v_max_f32 {v(M)}, {v(M)}, {v(M+2)}
        v_mov_b32 {v(M+2)}, {v(M)}
        v_permlane32_swap_b32 {v(M)}, {v(M+2)}
        v_mov_b32 {v(M+1)}, {v(M)}
        v_mov_b32 {v(M+3)}, {v(M+2)}
        v_permlane16_swap_b32 {v(M)}, {v(M+1)}
        v_permlane16_swap_b32 {v(M+2)}, {v(M+3)}""".replace("        ", "").split("\n")
        PP = lambda u: ACC + u*4
        O = lambda u: TMP + 16 + u*4
        SM = lambda u: TMP + 32 + u*4
        OP = ACC + 48
        for u in range(4):
            for hh in range(4): E.append(pk("add", S(u)+2*hh, ("p", S(u)+2*hh), ("nb", M+u)))
        for u, (Tl, h) in enumerate(U):
            for r in range(8): E.append(f"v_exp_f32 {v(S(u)+r)}, {v(S(u)+r)}")
            for hh in range(4): E.append(f"v_cvt_pk_bf16_f32 {v(PP(u)+hh)}, {v(S(u)+2*hh)}, {v(S(u)+2*hh+1)}")
            if u:
                T2, h2 = U[u-1]
                E.append(f"v_mfma_f32_16x16x32_bf16 {v(SM(u-1),4)}, {v(vONE,4)}, {v(PP(u-1),4)}, 0")
                E.append(f"v_mfma_f32_16x16x32_bf16 {v(O(u-1),4)}, {v(VV(T2,h2),4)}, {v(PP(u-1),4)}, 0")
        E += [f"s_mul_i32 {s(sT)}, {s(sW)}, {2*57344}", f"s_lshl_b32 {s(sT+1)}, {s(sC16)}, 10"]
        E.append(f"v_mfma_f32_16x16x32_bf16 {v(SM(3),4)}, {v(vONE,4)}, {v(PP(3),4)}, 0")
        E.append(f"v_mfma_f32_16x16x32_bf16 {v(O(3),4)}, {v(VV(1,1),4)}, {v(PP(3),4)}, 0")
        E += [f"s_add_u32 {s(sT)}, {s(sT)}, {s(sT+1)}", f"s_add_u32 {s(sT)}, {s(sT)}, {s(sH)}", f"s_add_u32 {s(sT+1)}, {s(sT)}, 57344"]
        for u in range(4):
            E.append(f"v_rcp_f32 {v(SM(u))}, {v(SM(u))}")
            if u:
                for hh in range(2): E.append(pk("mul", O(u-1)+2*hh, ("p", O(u-1)+2*hh), ("b", SM(u-1))))
                for hh in range(2): E.append(f"v_cvt_pk_bf16_f32 {v(OP+2*(u-1)+hh)}, {v(O(u-1)+2*hh)}, {v(O(u-1)+2*hh+1)}")
        for hh in range(2): E.append(pk("mul", O(3)+2*hh, ("p", O(3)+2*hh), ("b", SM(3))))
        for hh in range(2): E.append(f"v_cvt_pk_bf16_f32 {v(OP+6+hh)}, {v(O(3)+2*hh)}, {v(O(3)+2*hh+1)}")
        p.add(pace(E, bg, self.o["p_attn"], 1000))
        assert not bg, len(bg)
        self.store_m([f"buffer_store_dwordx4 {v(OP+4*Tl,4)}, {v(vL16)}, {s(SWS,4)}, {s(sT+Tl)} offen" for Tl in range(2)])
        self.stamp(f"qkv{layer}_attn")
        self.publish(st + 1)
        if layer == 1: p.add(self.stash(0, range(23), True))
    def ksplit(self, layer, which):
        p = self.p
        isW2 = which == "w2"
        nk = 14 if isW2 else 4
        st = 4*layer + (3 if isW2 else 1)
        groups = W2G if isW2 else WOG; ob = OB_W2 if isW2 else OB_WO
        if isW2 and layer == 0:
            ring = [("a", 112), ("a", 224), ("a", 240), ("v", TMP+8), ("v", TMP+24), ("v", AF+32), ]
        elif isW2: ring = [("a", 16*i) for i in range(14)]
        else: ring = [("a", (0 if layer == 0 else 128) + 16*i) for i in range(4)]
        def breg(ks, u):
            k, b = ring[ks % len(ring)]
            return (a_ if k == "a" else v)(b + 4*u, 4)
        for u in range(4):
            p(f"""s_add_u32 {s(sT+4)}, {s(sW)}, {u}
            s_and_b32 {s(sT+4)}, {s(sT+4)}, 3
            s_lshl_b32 {s(sT+5)}, {s(sRQ)}, 2
            s_add_u32 {s(sT+4)}, {s(sT+4)}, {s(sT+5)}
            s_mul_i32 {s(sXA+u)}, {s(sT+4)}, 57344
            s_mul_i32 {s(sT+4)}, {s(sW)}, {nk*1024}
            s_add_u32 {s(sXA+u)}, {s(sXA+u)}, {s(sT+4)}
            s_add_u32 {s(sXA+u)}, {s(sXA+u)}, {s(sH)}""")
        def reads(ks):
            out = []
            for P in range(2): out += self.trpair(AF + (ks & 1)*16 + 8*P, vP0, vP1, groups[ks] + P*1024, 2048, f"rd{ks}a")
            return out
        self.poll(st)
        self.stamp(f"{which}{layer}_go")
        def bload(ks):
            out = []
            for u in (1, 2, 3, 0):
                it = [f"s_add_u32 {s(sXA+u)}, {s(sXA+u)}, 4096"] if ks and ks % 4 == 0 else []
                out.append(it + [Ins(f"buffer_load_dwordx4 {breg(ks,u)}, {v(vL16)}, {s(SWS,4)}, {s(sXA+u)} offen offset:{(ks%4)*1024} sc1", f"hb{ks}")])
            return out
        npre = 2
        p.add(bload(0)); p.add(reads(0)); p.add(bload(1))
        acc = lambda u, nt: ACC + (u*4+nt)*4
        npf = self.o["w2_pre"][layer]
        bg = []
        if not isW2:
            if layer == 0: bg = self.dma_w1(range(self.o["w1_attn"], 5), range(2))
            else:
                bg = [[f"v_add_u32 {v(TMP)}, {(0x1000 - C0) & 0xffffffff}, {v(vHE0)}", f"v_add_u32 {v(TMP+1)}, {(0x10 - C1) & 0xffffffff}, {v(vHE1)}",
                       f"v_subrev_u32 {v(TMP+2)}, 128, {v(vHo)}", f"s_or_b32 {s(sT)}, {s(sC16)}, {s(sW)}", f"s_cmp_eq_u32 {s(sT)}, 0",
                       f"s_cselect_b32 {s(sM)}, 0xff, 0", f"s_mov_b32 {s(sM+1)}, 0", f"s_mov_b64 exec, {s(sM,2)}",
                       Ins(f"buffer_store_dwordx2 {v(TMP,2)}, {v(TMP+2)}, {s(SWS,4)}, 0 offen sc1", "ep"), "s_mov_b64 exec, -1"]]
        nxt = npre; ndma = npf
        for ks in range(nk):
            buf = AF + (ks & 1)*16
            m = [f"v_mfma_f32_16x16x32_bf16 {v(acc(u,nt),4)}, {v(buf+4*nt,4)}, {breg(ks,u)}, {'0' if ks == 0 else v(acc(u,nt),4)}"
                 for u in (1, 2, 3, 0) for nt in range(4)]
            pl = [("pre", [W2([], [f"rd{ks}a"])], 0)]
            if ks + 1 < nk:
                rr = reads(ks+1)
                if isW2 and ks + 1 >= npf: rr = [[Ctl("wait_vm", tags={f"w2_{ks+1}"}), rr[0]]] + rr[1:]
                pl.append((rr, 4, 1))
            vi = []
            while nxt < nk and nxt < ks + len(ring) and len(vi) < (8 if ks == 0 and not isW2 else 5):
                vi += bload(nxt); nxt += 1
            if isW2:
                while ndma < nk and (ndma < 9 or ndma - 9 <= ks - 1) and len(vi) < 8:
                    vi += self.dma_priv(SW2, sG2, ndma, groups[ndma], f"w2_{ndma}"); ndma += 1
            while bg and len(vi) < 4: vi.append(bg.pop(0))
            stride = 2 if len(vi) > 4 else 4
            pl.append((vi, 0 if stride == 2 else 1, stride))
            p.add(gaps(m, *pl))
        self.stamp(f"{which}{layer}_loop")
        E = []
        for u in range(1, 4):
            for nt in range(4): E.append(f"ds_write_b128 {v(vRW)}, {v(acc(u,nt),4)} offset:{ob[u-1] - RBASE + nt*1024}")
        E += [Ctl("wait_lg_all"), "s_barrier"]
        R = AF
        for u in range(1, 4):
            for nt in range(4): E.append(f"ds_read_b128 {v(R + ((u-1)*4+nt)*4,4)}, {v(vRR+u-1)} offset:{ob[u-1] - RBASE + nt*1024}")
        for u in range(1, 4):
            for nt in range(4):
                for h in range(2): E.append(pk("add", acc(0,nt)+2*h, ("p", acc(0,nt)+2*h), ("p", R + ((u-1)*4+nt)*4 + 2*h)))
        for i in range(8):
            if isW2: E.append(pk("fma", vXR+2*i, ("p", ACC+2*i), ("b", vRf), ("p", vXR+2*i)))
            else: E.append(pk("add", vXR+2*i, ("p", ACC+2*i), ("p", vXR+2*i)))
        p.add(pace(E, bg, 70, 1000)); p.add(bg)
        final = isW2 and layer == 1
        if not final:
            p(f"s_add_u32 {s(sX)}, {s(sX)}, {s(sD0)}\ns_add_u32 {s(sST)}, {s(sST)}, 0x20000")
        p(f"s_add_u32 {s(sH)}, {s(sH)}, {s(sD1)}")
        self.finish_x(1, final=final, halo=(isW2 and layer == 0))
        self.stamp(f"{which}{layer}_epi")
        if final: return
        self.publish(st + 1, halo=(isW2 and layer == 0))
        if not isW2:
            if layer == 0:
                for d in self.dma_w1([5, 6, 7], [2, 3]): p.add(d)
            else: p.add(self.stash(0, range(23, 28), True))
        else: p.add(self.stash(128, range(24), True))
    def w1(self, layer):
        p = self.p
        st = 4*layer + 2
        XB = 0 if layer == 0 else 128
        p.add(self.x_setup())
        p(f"s_lshl_b32 {s(sXA+3)}, {s(sTown)}, 10\ns_add_u32 {s(sXA+3)}, {s(sXA+3)}, {s(sST)}")
        self.poll(st)
        p.wait_lg_all()
        p("s_barrier")
        self.stamp(f"w1{layer}_go")
        xi = self.x_items(XB)
        p.add(xi[:4])
        acc = lambda T, t: ACC + (T*7+t)*4
        def reads(sk):
            b = AF + (sk & 1)*28; out = []
            for P in range(3): out += self.trpair(b + 8*P, vT0, vT1, W1A(sk) + P*1024, 3072)
            for rd in range(2):
                r, o = lds(vTs, W1A(sk) + 6144 + rd*512); out.append(Ins(f"ds_read_b64_tr_b16 {v(b+24+2*rd,2)}, {r} offset:{o}"))
            for i, r in enumerate(out): r.tag = f"rd{sk}{'a' if i < 8 else 'b'}"
            return out
        p.add(reads(0)); p.add(xi[4:6])
        vq = xi[6:10] + self.stat_items() + xi[10:] + [Ins(f"buffer_load_dwordx4 {v(TMP+4,4)}, {v(vL16)}, {s(SWS,4)}, {s(sXA+3)} offen sc1", "stf"), self.pretouch_h()]
        for ks in range(2): vq += self.dma_priv(SW2, sG2, ks, W2G[ks], "w2")
        mid = self.o["w1_mid"]
        vq2 = []
        for ks in range(2, 5): vq2 += self.dma_priv(SW2, sG2, ks, W2G[ks], "w2")
        fq = self.stats_from(TMP+8, vNM, vRSD) + self.stats_from(TMP+12, vNM+1, vRSD+1)
        sq = self.stash(0, range(28), False) if layer == 0 else []
        def mf(sk):
            buf = AF + (sk & 1)*28
            return [f"v_mfma_f32_16x16x32_bf16 {v(acc(Tl,t),4)}, {v(buf+4*t,4)}, {a_(XB + (sk*2+Tl)*4,4)}, {'0' if sk == 0 else v(acc(Tl,t),4)}"
                    for t in range(7) for Tl in range(2)]
        def extra(sk):
            pl = []
            if sq and sk >= 1:
                n = 2 if sk < 15 else len(sq)
                pl.append(([sq.pop(0) for _ in range(min(n, len(sq)))], 2, 8))
            if sk == mid:
                pl.append(("pre", ["s_barrier"], 1)); vq.extend(vq2); vq2.clear()
            return pl
        if layer == 0:
            pre = vq[:4]; del vq[:4]
            self.csum_pass(f"s_mul_i32 {s(sT)}, {s(sW)}, {4*7168}", 3, 7168, set(), True, pre)
        self.gemm_loop(16, mf, reads, vq, fq, lambda sk: [1, 5, 9] + ([13] if sk >= 10 else []), lambda sk: ([] if sk < 4 else [0, 3, 4, 6, 11, 12]), 8, extra)
        p.add(fq)
        self.stamp(f"w1{layer}_loop")
        p.add(vq)
        p.add(self.stats_from(TMP+4, TMP+2, vRf))
        CS = TMP + 16
        p.wait_lg_all(); p("s_barrier")
        bg = list(vq2)
        for ks in range(5, self.o["w2_pre"][layer]): bg += self.dma_priv(SW2, sG2, ks, W2G[ks], "w2")
        self.csum_get(layer == 0, 7, 0, CS, CS1 - TAB)
        HP = lambda T, t: AF + (T*8+t)*2
        E = []
        for Tl in range(2):
            for t in range(7):
                for h in range(2): E.append(pk("fma", acc(Tl,t)+2*h, ("p", CS+4*t+2*h), ("b", vNM+Tl), ("p", acc(Tl,t)+2*h)))
                for h in range(2): E.append(f"v_cvt_pk_bf16_f32 {v(HP(Tl,t)+h)}, {v(acc(Tl,t)+2*h)}, {v(acc(Tl,t)+2*h+1)}")
                for h in range(2): E.append(f"v_pk_max_i16 {v(HP(Tl,t)+h)}, {v(HP(Tl,t)+h)}, 0")
        p.add(pace(E, bg, 70, 1000))
        p(f"""s_mul_i32 {s(sT)}, {s(sW)}, {2*57344}
        s_add_u32 {s(sT)}, {s(sT)}, {s(sH)}
        s_add_u32 {s(sT+2)}, {s(sT)}, {s(sHs)}
        s_add_u32 {s(sT)}, {s(sT)}, {s(sHp)}
        s_add_u32 {s(sT+1)}, {s(sT)}, 57344
        s_add_u32 {s(sT+3)}, {s(sT+2)}, 57344""")
        L = []
        for Tl in range(2):
            for P in range(3): L.append(f"buffer_store_dwordx4 {v(HP(Tl,2*P),4)}, {v(vL16)}, {s(SWS,4)}, {s(sT+Tl)} offen offset:{P*1024}")
            L.append(f"buffer_store_dwordx2 {v(HP(Tl,6),2)}, {v(vL16)}, {s(SWS,4)}, {s(sT+2+Tl)} offen")
        self.store_m(L)
        self.stamp(f"w1{layer}_epi")
        n1 = len(bg)//2
        p.add(bg[:n1])
        self.publish(st + 1)
        p.add(bg[n1:])
    def build(self):
        p = self.p
        self.setup(); self.stamp("setup")
        if self.stamps:
            p(f"s_memrealtime {s(sTS,2)}\ns_waitcnt lgkmcnt(0)\nv_writelane_b32 {v(vTSV)}, {s(sTS)}, 62")
        self.stage0(); self.stamp("s0")
        for layer in range(2):
            self.qkv(layer); self.ksplit(layer, "wo"); self.w1(layer); self.ksplit(layer, "w2")
        if self.stamps:
            p.wait_vm_all(); self.stamp("end")
            p(f"s_memrealtime {s(sTS,2)}\ns_waitcnt lgkmcnt(0)\nv_writelane_b32 {v(vTSV)}, {s(sTS)}, 63")
            p(f"v_writelane_b32 {v(vTSV)}, {s(sMODE)}, 61")
            p(f"""s_lshl_b32 {s(sT)}, s2, 10
            s_lshl_b32 {s(sT+1)}, {s(sW)}, 8
            s_add_u32 {s(sT)}, {s(sT)}, {s(sT+1)}
            s_add_u32 {s(sT)}, {s(sT)}, {TSB}
            v_lshrrev_b32 {v(TMP)}, 2, {v(vL16)}
            buffer_store_dword {v(vTSV)}, {v(TMP)}, {s(SWS,4)}, {s(sT)} offen""")
        p("L_END:\ns_endpgm")
        body, stats = finalize(p)
        txt = (f"; STAMPS {self.names}\n" if self.stamps else "") + header([(None, (256,1,1), (256,1,1), 163840)]) + kernel_begin(NAME) + body + rodata_begin() + kernel_desc(NAME, 512, 102, 256)
        return txt, stats

if __name__ == "__main__":
    import argparse
    ap = argparse.ArgumentParser()
    ap.add_argument("out"); ap.add_argument("--distinct", action="store_true"); ap.add_argument("--stamps", action="store_true")
    ap.add_argument("--fallback", action="store_true"); ap.add_argument("--opts", default="{}")
    a = ap.parse_args()
    import ast
    txt, stats = K(a.distinct, a.stamps, a.fallback, ast.literal_eval(a.opts)).build()
    open(a.out, "w").write(txt); print(stats, len(txt))
```
